```python
import torch

def _softmax(x, axis=-1):
    return torch.softmax(x, dim=axis)
def _gelu(x):
    return torch.nn.functional.gelu(x, approximate="tanh")
def _silu(x):
    return torch.nn.functional.silu(x)
def _sigmoid(x):
    return torch.sigmoid(x)
def _layernorm(x, axis=-1, eps=1e-5):
    m = x.mean(dim=axis, keepdim=True)
    v = x.var(dim=axis, keepdim=True, unbiased=False)
    return (x - m) / torch.sqrt(v + eps)
def _scatter_add(tgt, idx, src, axis=0):
    return tgt.clone().index_add_(axis, idx, src)
def _segment_sum(src, seg, n):
    out = torch.zeros((n,) + src.shape[1:], dtype=src.dtype)
    return out.index_add_(0, seg, src)
def _pad(x, pw):
    flat = tuple(v for pair in reversed(pw) for v in pair)
    return torch.nn.functional.pad(x, flat)

kernel_name = 'sequential_preLN__mha_block__glu_gated_swiglu__prompt'

def setup_inputs():

    _w = (lambda a: (lambda t: t.to(torch.bfloat16) if t.is_floating_point() else t)(torch.as_tensor(a)))
    def _A_setup():
        B, S, D, H = 1, 2048, 448, 16
        return {
            "x": _w((lambda *s: torch.randn(*s, dtype=torch.bfloat16) * 0.05)(B, S, D)),
            "wqkv": _w((lambda *s: torch.randn(*s, dtype=torch.bfloat16) * 0.05)(D, 3 * D)),
            "wo": _w((lambda *s: torch.randn(*s, dtype=torch.bfloat16) * 0.05)(D, D)),
        }
    _A_in = _A_setup()

    def _B_setup():
        B, S, D, F = 1, 2048, 448, 1792
        return {
            "x": _w((lambda *s: torch.randn(*s, dtype=torch.bfloat16) * 0.05)(B, S, D)),
            "w1": _w((lambda *s: torch.randn(*s, dtype=torch.bfloat16) * 0.4)(D, F) * (2.0 / D) ** 0.5),
            "w3": _w((lambda *s: torch.randn(*s, dtype=torch.bfloat16) * 0.4)(D, F) * (2.0 / D) ** 0.5),
            "w2": _w((lambda *s: torch.randn(*s, dtype=torch.bfloat16) * 0.4)(F, D) * (2.0 / F) ** 0.5),
        }
    _B_in = _B_setup()

    return {
        "A_x": _A_in["x"],
        "A_wqkv": _A_in["wqkv"],
        "A_wo": _A_in["wo"],
        "B_x": _B_in["x"],
        "B_w1": _B_in["w1"],
        "B_w3": _B_in["w3"],
        "B_w2": _B_in["w2"],
    }

def reference(A_x, A_wqkv, A_wo, B_x, B_w1, B_w3, B_w2):
    def _A_ref(x, wqkv, wo):
        B, S, D = x.shape
        H = 16
        Dh = D // H
        qkv = (lambda x, *d: x.permute(*d))((x @ wqkv).reshape(B, S, 3, H, Dh), 2, 0, 3, 1, 4)
        q, k, v = qkv[0], qkv[1], qkv[2]
        scores = torch.einsum("bhqd,bhkd->bhqk", q, k) * (Dh ** -0.5)
        p = _softmax(scores, axis=-1)
        o = torch.einsum("bhqk,bhkd->bhqd", p, v)
        return (lambda x, *d: x.permute(*d))(o, 0, 2, 1, 3).reshape(B, S, D) @ wo

    def _B_ref(x, w1, w3, w2):
        gate = torch.einsum("bsd,df->bsf", x, w1)
        up = torch.einsum("bsd,df->bsf", x, w3)
        h = _silu(gate) * up
        out = torch.einsum("bsf,fd->bsd", h, w2)
        return out

    x = A_x
    h = x + _A_ref(_layernorm(x, axis=-1), A_wqkv, A_wo)
    h2 = h + _B_ref(_layernorm(h, axis=-1), B_w1, B_w3, B_w2)
    return h2
```

```python
import re

TRANS = ("v_exp_", "v_log_", "v_rcp_", "v_rsq_", "v_sqrt_", "v_sin_", "v_cos_")
REG_RE = re.compile(r"^(-|abs\()?\s*([vas])(?:(\d+)|\[(\d+):(\d+)\])\)?$")


def regs_of(tok):
    tok = tok.strip()
    if tok in ("vcc", "vcc_lo", "vcc_hi"):
        return {("vcc", 0)}
    if tok in ("exec", "exec_lo", "exec_hi"):
        return {("exec", 0)}
    if tok == "m0":
        return {("m0", 0)}
    t = tok
    if t.startswith("-"):
        t = t[1:]
    if t.startswith("abs(") and t.endswith(")"):
        t = t[4:-1]
    if t.startswith("|") and t.endswith("|"):
        t = t[1:-1]
    m = re.match(r"^([vas])(?:(\d+)|\[(\d+):(\d+)\])$", t)
    if not m:
        return set()
    k = m.group(1)
    if m.group(2) is not None:
        return {(k, int(m.group(2)))}
    return {(k, i) for i in range(int(m.group(3)), int(m.group(4)) + 1)}


class Ins:
    __slots__ = ("text", "op", "ops", "mods", "dst", "src", "kind", "srcC", "srcAB", "passes", "target", "sdata")

    def __init__(self, text):
        self.text = text
        body = text.split(";")[0].strip()
        parts = body.split(None, 1)
        self.op = parts[0]
        rest = parts[1] if len(parts) > 1 else ""
        ops, cur, depth = [], "", 0
        for ch in rest:
            if ch in "[(":
                depth += 1
            if ch in "])":
                depth -= 1
            if ch == "," and depth == 0:
                ops.append(cur.strip())
                cur = ""
            else:
                cur += ch
        if cur.strip():
            ops.append(cur.strip())
        self.mods = ""
        if ops:
            sp = ops[-1].split(None, 1)
            if len(sp) > 1 and not ops[-1].startswith("hwreg"):
                ops[-1] = sp[0]
                self.mods = sp[1]
        self.ops = ops
        self.dst, self.src = set(), set()
        self.srcC, self.srcAB, self.sdata = set(), set(), set()
        self.passes = 0
        self.target = None
        op = self.op
        R = [regs_of(o) for o in ops]
        if op.startswith("v_mfma"):
            self.kind = "mfma"
            self.dst = R[0]
            self.srcAB = R[1] | R[2]
            self.srcC = R[3]
            self.src = self.srcAB | self.srcC
            self.passes = 8 if "32x32" in op else 4
        elif op.startswith("v_"):
            self.kind = "valu"
            if op.startswith("v_cmp"):
                self.dst = set(R[0])
                if op.startswith("v_cmpx"):
                    self.dst |= {("exec", 0)}
                for r in R[1:]:
                    self.src |= r
            elif op.startswith("v_permlane") and "swap" in op:
                self.dst = R[0] | R[1]
                self.src = R[0] | R[1]
            elif op.startswith(("v_add_co", "v_sub_co", "v_subrev_co", "v_addc_co", "v_subb_co", "v_div_scale", "v_mad_u64")):
                self.dst = R[0] | R[1]
                for r in R[2:]:
                    self.src |= r
            elif op == "v_nop":
                pass
            else:
                self.dst = set(R[0])
                for r in R[1:]:
                    self.src |= r
                if op.startswith(("v_fmac", "v_dot2c", "v_pk_fmac", "v_writelane")) or "UNUSED_PRESERVE" in self.mods or "_dpp" in op:
                    self.src |= R[0]
                if op.startswith("v_cndmask") and len(ops) == 3:
                    self.src |= {("vcc", 0)}
        elif op.startswith("ds_"):
            self.kind = "ds"
            if op.startswith(("ds_read", "ds_bpermute", "ds_permute", "ds_swizzle")) or "_rtn" in op:
                self.dst = set(R[0])
                for r in R[1:]:
                    self.src |= r
            else:
                for r in R:
                    self.src |= r
        elif op.startswith(("buffer_", "global_", "flat_")):
            self.kind = "vmem"
            lds = " lds" in (" " + self.mods) or "_lds_" in op
            if op in ("buffer_inv", "buffer_wbl2"):
                pass
            elif lds:
                for r in R:
                    self.src |= r
                self.src |= {("m0", 0)}
                self.kind = "vmem_lds"
            elif "load" in op:
                self.dst = set(R[0])
                for r in R[1:]:
                    self.src |= r
            elif "atomic" in op:
                ret = "sc0" in self.mods
                if op.startswith("buffer"):
                    for r in R:
                        self.src |= r
                    if ret:
                        self.dst = set(R[0])
                else:
                    if ret:
                        self.dst = set(R[0])
                        for r in R[1:]:
                            self.src |= r
                    else:
                        for r in R:
                            self.src |= r
            else:
                for r in R:
                    self.src |= r
                if "x3" in op or "x4" in op:
                    self.sdata = R[0] if op.startswith("buffer") else R[1]
        elif op.startswith("s_"):
            self.kind = "salu"
            if op.startswith(("s_cbranch", "s_branch")):
                self.kind = "branch"
                self.target = ops[0]
            elif op.startswith(("s_cmp", "s_waitcnt", "s_nop", "s_barrier", "s_endpgm", "s_setprio", "s_sleep", "s_bitcmp")):
                for r in R:
                    self.src |= r
            else:
                if R:
                    self.dst = set(R[0])
                for r in R[1:]:
                    self.src |= r
                if "saveexec" in op:
                    self.dst |= {("exec", 0)}
        else:
            raise ValueError("unknown instruction: " + text)

    def states(self):
        if self.op == "s_nop":
            return int(self.ops[0], 0) + 1
        return 1

    def is_trans(self):
        return self.op.startswith(TRANS)


def vgprs(s):
    return {r for r in s if r[0] in ("v", "a")}


def sgprs(s):
    return {r for r in s if r[0] in ("s", "vcc")}


def need(prev, cur):
    n = 0
    pk, ck = prev.kind, cur.kind
    if pk == "valu":
        wv = vgprs(prev.dst)
        ws = sgprs(prev.dst)
        if ck == "mfma" and wv & cur.src:
            n = max(n, 2)
        if ck == "valu":
            if wv & cur.src:
                if cur.op.startswith("v_permlane") or "_dpp" in cur.op or "row_" in cur.mods or "quad_perm" in cur.mods:
                    n = max(n, 2)
                if cur.op.startswith(("v_readlane", "v_readfirstlane")):
                    n = max(n, 1)
                if prev.is_trans() and not cur.is_trans():
                    n = max(n, 1)
                if "sdwa" in prev.op or "op_sel" in prev.mods and not prev.op.startswith("v_pk"):
                    n = max(n, 1)
            if ws & cur.src:
                n = max(n, 4 if cur.op.startswith(("v_readlane", "v_writelane")) else 2)
            if ("exec", 0) in prev.dst:
                n = max(n, 5)
        if prev.op.startswith("v_dot") and ck in ("valu", "mfma", "ds", "vmem", "vmem_lds"):
            if cur.op == prev.op:
                srcab = set()
                for o in cur.ops[1:3]:
                    srcab |= regs_of(o)
                if wv & srcab:
                    n = max(n, 3)
            elif wv & (cur.src | cur.dst):
                n = max(n, 3)
        if ck == "mfma" and ("exec", 0) in prev.dst:
            n = max(n, 4)
        if ck in ("vmem", "vmem_lds") and ws & cur.src:
            n = max(n, 5)
        if ck in ("salu", "branch") and (ws & cur.src or (("vcc", 0) in prev.dst and "vcc" in cur.op)):
            n = max(n, 1)
    if pk == "mfma":
        big = 12 if prev.passes == 8 else 8
        ovl = 10 if prev.passes == 8 else 6
        war = 7 if prev.passes == 8 else 3
        D = prev.dst
        if ck == "mfma":
            if D & cur.srcAB:
                n = max(n, big)
            if D & cur.srcC and not (D == cur.srcC and prev.passes == cur.passes):
                n = max(n, ovl)
        elif ck == "valu":
            if D & (cur.src | cur.dst):
                n = max(n, big)
            if prev.srcC & cur.dst:
                n = max(n, war)
        elif ck in ("ds", "vmem", "vmem_lds"):
            if D & (cur.src | cur.dst):
                n = max(n, big)
            if prev.srcC & cur.dst:
                n = max(n, war)
    if pk == "salu" and ("m0", 0) in prev.dst and ck == "vmem_lds":
        n = max(n, 1)
    if pk == "vmem" and prev.sdata and (prev.sdata & cur.dst):
        n = max(n, 2)
    return n


WINDOW = 14


class Asm:
    def __init__(self):
        self.items = []

    def __call__(self, text):
        for ln in text.split("\n"):
            s = ln.strip()
            if not s:
                continue
            if s.startswith(";"):
                self.items.append(("t", "    " + s))
            elif s.endswith(":") and " " not in s:
                self.items.append(("l", s[:-1]))
            elif s.startswith("."):
                self.items.append(("t", s))
            else:
                self.items.append(("i", Ins(s)))

    def label(self, name):
        self.items.append(("l", name))

    def raw(self, text):
        self.items.append(("t", text))

    @staticmethod
    def _required(hist, cur):
        dist = 0
        req = 0
        for p in reversed(hist):
            nd = need(p, cur)
            if nd - dist > req:
                req = nd - dist
            dist += p.states()
            if dist >= WINDOW:
                break
        return req

    def finish(self):
        out = []
        hist = []
        npad = 0
        for kind, it in self.items:
            if kind == "i":
                r = self._required(hist, it)
                if r > 0:
                    nop = Ins("s_nop %d" % (r - 1))
                    out.append(("i", nop))
                    hist.append(nop)
                    npad += 1
                out.append((kind, it))
                hist.append(it)
                if it.op in ("s_branch", "s_endpgm"):
                    hist = []
                hist = hist[-WINDOW:]
            else:
                out.append((kind, it))
        labels = {it: i for i, (k, it) in enumerate(out) if k == "l"}
        hist = []
        for i, (kind, it) in enumerate(out):
            if kind != "i":
                continue
            hist.append(it)
            hist = hist[-WINDOW:]
            if it.kind == "branch" and it.target in labels:
                h = list(hist)
                j = labels[it.target]
                cnt = 0
                while j < len(out) and cnt < WINDOW:
                    k2, i2 = out[j]
                    j += 1
                    if k2 != "i":
                        continue
                    r = self._required(h, i2)
                    if r > 0:
                        raise RuntimeError("hazard across branch %s -> '%s' needs %d more" % (it.text, i2.text, r))
                    h.append(i2)
                    cnt += i2.states()
                    if i2.op in ("s_branch", "s_endpgm"):
                        break
        txt = []
        for kind, it in out:
            if kind == "i":
                txt.append("    " + it.text)
            elif kind == "l":
                txt.append(it + ":")
            else:
                txt.append(it)
        self.npad = npad
        return "\n".join(txt) + "\n"

    def max_regs(self):
        mv = ma = ms = -1
        for kind, it in self.items:
            if kind == "i":
                for k, n in it.dst | it.src:
                    if k == "v":
                        mv = max(mv, n)
                    elif k == "a":
                        ma = max(ma, n)
                    elif k == "s":
                        ms = max(ms, n)
        return mv + 1, ma + 1, ms + 1


def vr(a, n=1):
    return "v%d" % a if n == 1 else "v[%d:%d]" % (a, a + n - 1)


def ar(a, n=1):
    return "a%d" % a if n == 1 else "a[%d:%d]" % (a, a + n - 1)


def sr(a, n=1):
    return "s%d" % a if n == 1 else "s[%d:%d]" % (a, a + n - 1)


def kernel_text(name, asm, min_sgpr=0):
    body = asm.finish()
    nv, na, ns = asm.max_regs()
    acc = max(4, (nv + 3) // 4 * 4)
    nfv = acc + na if na > 0 else nv
    head = ".globl %s\n.p2align 8\n.type %s,@function\n%s:\n" % (name, name, name)
    desc = (
        ".amdhsa_kernel %s\n"
        "  .amdhsa_next_free_vgpr %d\n"
        "  .amdhsa_next_free_sgpr %d\n"
        "  .amdhsa_accum_offset %d\n"
        "  .amdhsa_group_segment_fixed_size 0\n"
        "  .amdhsa_kernarg_size 80\n"
        "  .amdhsa_user_sgpr_count 2\n"
        "  .amdhsa_user_sgpr_kernarg_segment_ptr 1\n"
        "  .amdhsa_system_sgpr_workgroup_id_x 1\n"
        "  .amdhsa_float_denorm_mode_32 3\n"
        ".end_amdhsa_kernel\n" % (name, nfv, max(ns, min_sgpr, 16), acc)
    )
    return head + body, desc, (nv, na, ns, asm.npad)
```

```python
import math
import struct
import sys
from asmlib import Asm, vr, ar, sr, kernel_text

NAME = "sequential_preLN__mha_block__glu_gated_swiglu__prompt"
S, D, H, DH, F = 2048, 448, 16, 28, 1792
EPS = 1e-5

WS_QF = 0
WS_KF = 2 << 20
WS_VF = 4 << 20
WS_OF = 6 << 20
WS_HF = 8 << 20
WS_ST = 10 << 20
WS_CS = WS_ST + (1 << 18)
WS_GF = 12 << 20
WS_END = 20 << 20


def f2u(x):
    return struct.unpack("<I", struct.pack("<f", x))[0]


def hx(x):
    return "0x%x" % (x & 0xFFFFFFFF)


def srd(a, d, base, nbytes, off=0):
    if off:
        a("s_add_u32 s%d, s%d, %s" % (d, base, hx(off)))
        a("s_addc_u32 s%d, s%d, 0" % (d + 1, base + 1))
    else:
        a("s_mov_b32 s%d, s%d" % (d, base))
        a("s_mov_b32 s%d, s%d" % (d + 1, base + 1))
    a("s_mov_b32 s%d, %s" % (d + 2, hx(nbytes)))
    a("s_mov_b32 s%d, 0x20000" % (d + 3))


def srd_add(a, d, soff):
    a("s_add_u32 s%d, s%d, s%d" % (d, d, soff))
    a("s_addc_u32 s%d, s%d, 0" % (d + 1, d + 1))


def half_sum(a, v, t):
    a("v_mov_b32 v%d, v%d" % (t, v))
    a("v_permlane32_swap_b32 v%d, v%d" % (t, v))
    a("v_add_f32 v%d, v%d, v%d" % (v, v, t))


MFMA = "v_mfma_f32_32x32x16_bf16"


def k_qkv():
    a = Asm()
    SLOT = 28672
    NSLOT = 5
    XOFF = 12288
    sX, sW, sO = 8, 12, 16
    sWave, sHead, sTg, sT, sT2, sM = 20, 21, 22, 23, 24, 25
    sOnes = 26
    a("s_cmp_ge_u32 s2, 256")
    a("s_cbranch_scc1 qkv_done")
    a("s_load_dwordx4 s[4:7], s[0:1], 0")
    a("s_load_dwordx2 s[28:29], s[0:1], 72")
    a("v_lshrrev_b32 v1, 6, v0")
    a("v_and_b32 v0, 63, v0")
    a("v_readfirstlane_b32 s%d, v1" % sWave)
    a("s_and_b32 s%d, s2, 3" % sT)
    a("s_lshl_b32 s%d, s%d, 2" % (sT, sT))
    a("s_bfe_u32 s%d, s2, 0x20003" % sT2)
    a("s_add_u32 s%d, s%d, s%d" % (sHead, sT, sT2))
    a("s_bfe_u32 s%d, s2, 0x10002" % sT)
    a("s_lshl_b32 s%d, s%d, 3" % (sT, sT))
    a("s_lshr_b32 s%d, s2, 5" % sT2)
    a("s_add_u32 s%d, s%d, s%d" % (sTg, sT, sT2))
    a("s_mov_b32 s%d, 0x3f803f80" % sOnes)
    vXo = [2, 3, 4, 5]
    vWo = [6, 7, 8]
    vXa = [9, 10, 11, 12]
    vWa = 13
    vT, vT2, vT3 = 14, 15, 16
    a("v_lshrrev_b32 v%d, 3, v0" % vT)
    a("s_lshl_b32 s%d, s%d, 5" % (sT, sWave))
    a("v_add_u32 v%d, s%d, v%d" % (vT, sT, vT))
    a("v_mul_u32_u24 v%d, 896, v%d" % (vT, vT))
    a("v_lshrrev_b32 v%d, 4, v0" % vT2)
    a("v_and_b32 v%d, 7, v0" % vT3)
    for i in range(4):
        if i < 2:
            a("v_xor_b32 v%d, v%d, v%d" % (vXo[i], vT2, vT3))
            if i == 1:
                a("v_xor_b32 v%d, 4, v%d" % (vXo[i], vXo[i]))
            a("v_lshlrev_b32 v%d, 4, v%d" % (vXo[i], vXo[i]))
            a("v_add_u32 v%d, v%d, v%d" % (vXo[i], vXo[i], vT))
            if i == 1:
                a("v_add_u32 v%d, %d, v%d" % (vXo[i], 8 * 896, vXo[i]))
        else:
            a("v_add_u32 v%d, %d, v%d" % (vXo[i], 16 * 896, vXo[i - 2]))
    a("s_mul_i32 s%d, s%d, 56" % (sT, sHead))
    a("s_and_b32 s%d, s%d, 15" % (sM, sT))
    a("s_and_b32 s%d, s%d, 0xfffffff0" % (sT, sT))
    a("s_mul_i32 s%d, s%d, 192" % (sT2, sWave))
    for i in range(3):
        a("v_add_u32 v%d, s%d, v0" % (vT, sT2))
        if i:
            a("v_add_u32 v%d, %d, v%d" % (vT, 64 * i, vT))
        a("v_mul_u32_u24 v%d, 43691, v%d" % (vT2, vT))
        a("v_lshrrev_b32 v%d, 19, v%d" % (vT2, vT2))
        a("v_mul_u32_u24 v%d, 12, v%d" % (vT3, vT2))
        a("v_sub_u32 v%d, v%d, v%d" % (vT, vT, vT3))
        a("v_mul_u32_u24 v%d, 2688, v%d" % (vWo[i], vT2))
        a("v_lshrrev_b32 v%d, 2, v%d" % (vT2, vT))
        a("v_mul_u32_u24 v%d, 896, v%d" % (vT2, vT2))
        a("v_and_b32 v%d, 3, v%d" % (vT, vT))
        a("v_lshlrev_b32 v%d, 4, v%d" % (vT, vT))
        a("v_add3_u32 v%d, v%d, v%d, v%d" % (vWo[i], vWo[i], vT2, vT))
        a("v_add_u32 v%d, s%d, v%d" % (vWo[i], sT, vWo[i]))
    a("v_and_b32 v%d, 31, v0" % vT)
    a("v_lshrrev_b32 v%d, 5, v0" % vT2)
    a("v_bfe_u32 v%d, v0, 1, 3" % vT3)
    a("v_xor_b32 v%d, v%d, v%d" % (vT2, vT2, vT3))
    a("v_lshlrev_b32 v%d, 4, v%d" % (vT2, vT2))
    a("v_lshl_add_u32 v%d, v%d, 7, v%d" % (vT, vT, vT2))
    a("s_lshl_b32 s%d, s%d, 12" % (sT2, sWave))
    a("s_add_u32 s%d, s%d, %d" % (sT2, sT2, XOFF))
    a("v_add_u32 v%d, s%d, v%d" % (vXa[0], sT2, vT))
    for ks in range(1, 4):
        a("v_xor_b32 v%d, %d, v%d" % (vXa[ks], ks * 32, vXa[0]))
    a("v_lshrrev_b32 v%d, 5, v0" % vT)
    a("v_lshlrev_b32 v%d, 3, v%d" % (vT, vT))
    a("v_bfe_u32 v%d, v0, 2, 2" % vT2)
    a("v_add_u32 v%d, v%d, v%d" % (vT, vT, vT2))
    a("v_mul_u32_u24 v%d, 192, v%d" % (vT, vT))
    a("v_bfe_u32 v%d, v0, 4, 1" % vT2)
    a("v_lshlrev_b32 v%d, 5, v%d" % (vT2, vT2))
    a("v_and_b32 v%d, 3, v0" % vT3)
    a("v_lshlrev_b32 v%d, 3, v%d" % (vT3, vT3))
    a("v_add3_u32 v%d, v%d, v%d, v%d" % (vWa, vT, vT2, vT3))
    a("v_add_u32 v%d, s%d, v%d" % (vWa, sM, vWa))
    a("s_waitcnt lgkmcnt(0)")
    srd(a, sX, 4, 128 * 896)
    a("s_mul_i32 s%d, s%d, %d" % (sT, sTg, 128 * 896))
    srd_add(a, sX, sT)
    srd(a, sW, 6, 448 * 2688)
    srd(a, sO, 28, WS_VF + 2048)
    a("s_lshl_b32 s%d, s%d, 17" % (sT, sHead))
    srd_add(a, sO, sT)
    a("s_lshl_b32 s%d, s%d, 2" % (sT, sTg))
    a("s_add_u32 s%d, s%d, s%d" % (sT, sT, sWave))
    a("s_lshl_b32 s%d, s%d, 11" % (sT, sT))
    srd_add(a, sO, sT)
    sMw, sMx = 30, 31
    a("s_mul_i32 s%d, s%d, 3072" % (sMw, sWave))
    a("s_lshl_b32 s%d, s%d, 12" % (sMx, sWave))
    a("s_add_u32 s%d, s%d, %d" % (sMx, sMx, XOFF))

    def issue(st):
        base = (st % NSLOT) * SLOT
        a("s_mov_b32 s%d, %d" % (sT, st * 64 * 2688))
        for i in range(3):
            a("s_add_u32 m0, s%d, %d" % (sMw, base + i * 1024))
            a("buffer_load_dwordx4 v%d, s[%d:%d], s%d offen lds" % (vWo[i], sW, sW + 3, sT))
        a("s_mov_b32 s%d, %d" % (sT2, st * 128))
        for i in range(4):
            a("s_add_u32 m0, s%d, %d" % (sMx, base + i * 1024))
            a("buffer_load_dwordx4 v%d, s[%d:%d], s%d offen lds" % (vXo[i], sX, sX + 3, sT2))

    for st in range(5):
        issue(st)
    accQ, accK, accV = 20, 36, 52
    fX = [68, 72]
    fW = [76, 88]
    vSum, vSq, vCs = [100, 101], [102, 103], [104, 105, 106]
    for r in list(range(accQ, accQ + 48)) + vSum + vSq + vCs:
        a("v_mov_b32 v%d, 0" % r)
    cur_base = [0]

    def reads(g):
        st, ks = divmod(g, 4)
        b = g & 1
        a("ds_read_b128 %s, v%d" % (vr(fX[b], 4), vXa[ks]))
        for p in range(3):
            for q in range(2):
                a("ds_read_b64_tr_b16 %s, v%d offset:%d" % (vr(fW[b] + 4 * p + 2 * q, 2), vWa, ks * 3072 + q * 768 + p * 64))

    def sync(st):
        issued = min(6, max(4, st + 3))
        a("s_waitcnt vmcnt(%d) lgkmcnt(0)" % (7 * (issued - st)))
        a("s_barrier")
        if st >= 1 and st + 4 <= 6:
            issue(st + 4)
        base = (st % NSLOT) * SLOT
        dlt = base - cur_base[0]
        if dlt:
            for r in vXa + [vWa]:
                a("v_add_u32 v%d, %s, v%d" % (r, hx(dlt), r))
        cur_base[0] = base

    sync(0)
    reads(0)
    for g in range(28):
        b = g & 1
        if g + 1 < 28:
            if (g + 1) % 4 == 0:
                sync((g + 1) // 4)
                reads(g + 1)
            else:
                reads(g + 1)
                a("s_waitcnt lgkmcnt(7)")
        else:
            a("s_waitcnt lgkmcnt(0)")
        X = vr(fX[b], 4)
        a("%s %s, %s, %s, %s" % (MFMA, vr(accQ, 16), vr(fW[b], 4), X, vr(accQ, 16)))
        for i in range(4):
            a("v_dot2c_f32_bf16 v%d, v%d, v%d" % (vSq[i & 1], fX[b] + i, fX[b] + i))
            a("v_dot2c_f32_bf16 v%d, s%d, v%d" % (vCs[0], sOnes, fW[b] + i))
        a("%s %s, %s, %s, %s" % (MFMA, vr(accK, 16), vr(fW[b] + 4, 4), X, vr(accK, 16)))
        for i in range(4):
            a("v_dot2c_f32_bf16 v%d, s%d, v%d" % (vSum[i & 1], sOnes, fX[b] + i))
            a("v_dot2c_f32_bf16 v%d, s%d, v%d" % (vCs[1], sOnes, fW[b] + 4 + i))
        a("%s %s, %s, %s, %s" % (MFMA, vr(accV, 16), X, vr(fW[b] + 8, 4), vr(accV, 16)))
        for i in range(4):
            a("v_dot2c_f32_bf16 v%d, s%d, v%d" % (vCs[2], sOnes, fW[b] + 8 + i))
    vMean, vRs, vB = 2, 3, 4
    a("v_add_f32 v%d, v%d, v%d" % (vMean, vSum[0], vSum[1]))
    a("v_add_f32 v%d, v%d, v%d" % (vRs, vSq[0], vSq[1]))
    half_sum(a, vMean, vT)
    half_sum(a, vRs, vT)
    for p in range(3):
        half_sum(a, vCs[p], vT)
    a("v_mul_f32 v%d, %s, v%d" % (vMean, hx(f2u(1.0 / D)), vMean))
    a("v_mul_f32 v%d, %s, v%d" % (vRs, hx(f2u(1.0 / D)), vRs))
    a("v_fma_f32 v%d, -v%d, v%d, v%d" % (vRs, vMean, vMean, vRs))
    a("v_max_f32 v%d, 0, v%d" % (vRs, vRs))
    a("v_add_f32 v%d, %s, v%d" % (vRs, hx(f2u(EPS)), vRs))
    a("v_rsq_f32 v%d, v%d" % (vRs, vRs))
    a("v_mul_f32 v%d, v%d, v%d" % (vB, vRs, vMean))
    vSa, vSr = 5, 6
    a("v_and_b32 v%d, 31, v0" % vT)
    a("v_lshlrev_b32 v%d, 2, v%d" % (vT, vT))
    a("v_add_u32 v%d, s%d, v%d" % (vSa, sMx, vT))
    a("v_lshrrev_b32 v%d, 5, v0" % vT)
    a("v_lshlrev_b32 v%d, 4, v%d" % (vT, vT))
    a("v_add_u32 v%d, s%d, v%d" % (vSr, sMx, vT))
    a("ds_write_b32 v%d, v%d" % (vSa, vCs[0]))
    a("ds_write_b32 v%d, v%d offset:128" % (vSa, vCs[1]))
    a("ds_write_b32 v%d, v%d offset:256" % (vSa, vRs))
    a("ds_write_b32 v%d, v%d offset:384" % (vSa, vB))
    a("s_waitcnt lgkmcnt(0)")
    tQ, tK, tA, tB = 108, 124, 140, 156
    for k, t in enumerate((tQ, tK, tA, tB)):
        for i in range(4):
            a("ds_read_b128 %s, v%d offset:%d" % (vr(t + 4 * i, 4), vSr, k * 128 + i * 32))
    vRq = 7
    a("v_mul_f32 v%d, %s, v%d" % (vRq, hx(f2u(DH ** -0.5 * math.log2(math.e))), vRs))
    a("s_waitcnt lgkmcnt(12)")
    for r in range(16):
        a("v_fma_f32 v%d, -v%d, v%d, v%d" % (accQ + r, vMean, tQ + r, accQ + r))
        a("v_mul_f32 v%d, v%d, v%d" % (accQ + r, vRq, accQ + r))
    a("s_waitcnt lgkmcnt(8)")
    for r in range(16):
        a("v_fma_f32 v%d, -v%d, v%d, v%d" % (accK + r, vMean, tK + r, accK + r))
        a("v_mul_f32 v%d, v%d, v%d" % (accK + r, vRs, accK + r))
    a("s_mov_b32 exec_lo, 0")
    for r in range(12, 16):
        a("v_mov_b32 v%d, 0" % (accQ + r))
        a("v_mov_b32 v%d, %s" % (accK + r, "1.0" if r == 12 else "0"))
    a("s_mov_b32 exec_lo, -1")
    vM = 8
    a("v_mul_f32 v%d, v%d, v%d" % (vM, accQ, accK))
    for r in range(1, 16):
        a("v_fmac_f32 v%d, v%d, v%d" % (vM, accQ + r, accK + r))
    half_sum(a, vM, vT)
    a("s_mov_b32 exec_lo, 0")
    a("v_sub_f32 v%d, 0, v%d" % (accQ + 12, vM))
    a("s_mov_b32 exec_lo, -1")
    vLo = 9
    a("v_lshlrev_b32 v%d, 4, v0" % vLo)
    pk = 68
    for r in range(8):
        a("v_cvt_pk_bf16_f32 v%d, v%d, v%d" % (pk + r, accQ + 2 * r, accQ + 2 * r + 1))
    a("buffer_store_dwordx4 %s, v%d, s[%d:%d], 0 offen" % (vr(pk, 4), vLo, sO, sO + 3))
    a("buffer_store_dwordx4 %s, v%d, s[%d:%d], 0 offen offset:1024" % (vr(pk + 4, 4), vLo, sO, sO + 3))
    pk = 76
    for r in range(8):
        a("v_cvt_pk_bf16_f32 v%d, v%d, v%d" % (pk + r, accK + 2 * r, accK + 2 * r + 1))
    a("s_mov_b32 s%d, %s" % (sT, hx(WS_KF)))
    a("buffer_store_dwordx4 %s, v%d, s[%d:%d], s%d offen" % (vr(pk, 4), vLo, sO, sO + 3, sT))
    a("buffer_store_dwordx4 %s, v%d, s[%d:%d], s%d offen offset:1024" % (vr(pk + 4, 4), vLo, sO, sO + 3, sT))
    a("s_waitcnt lgkmcnt(0)")
    for r in range(16):
        a("v_mul_f32 v%d, v%d, v%d" % (tB + r, tB + r, vCs[2]))
        a("v_fma_f32 v%d, v%d, v%d, -v%d" % (accV + r, accV + r, tA + r, tB + r))
    pk = 84
    for r in range(8):
        a("v_cvt_pk_bf16_f32 v%d, v%d, v%d" % (pk + r, accV + 2 * r, accV + 2 * r + 1))
    a("s_mov_b32 exec_lo, 0x10000000")
    a("s_mov_b32 exec_hi, 0x10000000")
    for r in range(8):
        a("v_mov_b32 v%d, s%d" % (pk + r, sOnes))
    a("s_mov_b32 exec_lo, 0xe0000000")
    a("s_mov_b32 exec_hi, 0xe0000000")
    for r in range(8):
        a("v_mov_b32 v%d, 0" % (pk + r))
    a("s_mov_b64 exec, -1")
    a("s_mov_b32 s%d, %s" % (sT2, hx(WS_VF)))
    a("buffer_store_dwordx4 %s, v%d, s[%d:%d], s%d offen" % (vr(pk, 4), vLo, sO, sO + 3, sT2))
    a("buffer_store_dwordx4 %s, v%d, s[%d:%d], s%d offen offset:1024" % (vr(pk + 4, 4), vLo, sO, sO + 3, sT2))
    a.label("qkv_done")
    a("s_endpgm")
    return a, 256, 256, NSLOT * SLOT


def k_attn():
    a = Asm()
    SLOT = 32768
    SCR = 4 * SLOT
    sK, sV, sQ, sO = 8, 12, 16, 20
    sWave, sHead, sQg, sT, sT2, sHalf, sQb, sSt, sSo, sM, sNr = 24, 25, 26, 27, 28, 29, 30, 31, 32, 33, 34
    a("s_cmp_ge_u32 s2, 256")
    a("s_cbranch_scc1 attn_done")
    a("s_load_dwordx2 s[4:5], s[0:1], 72")
    a("v_lshrrev_b32 v1, 6, v0")
    a("v_and_b32 v0, 63, v0")
    a("v_readfirstlane_b32 s%d, v1" % sWave)
    a("s_and_b32 s%d, s2, 7" % sT)
    a("s_lshl_b32 s%d, s%d, 1" % (sT, sT))
    a("s_bfe_u32 s%d, s2, 0x10003" % sT2)
    a("s_add_u32 s%d, s%d, s%d" % (sHead, sT, sT2))
    a("s_lshr_b32 s%d, s2, 4" % sQg)
    a("s_lshr_b32 s%d, s%d, 2" % (sHalf, sWave))
    a("s_and_b32 s%d, s%d, 3" % (sQb, sWave))
    vLo, vAc, vAn = 1, 2, 3
    a("v_lshlrev_b32 v%d, 4, v0" % vLo)
    a("s_waitcnt lgkmcnt(0)")
    a("s_lshl_b32 s%d, s%d, 17" % (sT, sHead))
    srd(a, sK, 4, 131072, WS_KF)
    srd_add(a, sK, sT)
    srd(a, sV, 4, 131072, WS_VF)
    srd_add(a, sV, sT)
    srd(a, sQ, 4, 131072, WS_QF)
    srd_add(a, sQ, sT)
    a("s_lshl_b32 s%d, s%d, 2" % (sT, sQg))
    a("s_add_u32 s%d, s%d, s%d" % (sT, sT, sQb))
    a("s_lshl_b32 s%d, s%d, 11" % (sT2, sT))
    vQ = 4
    a("buffer_load_dwordx4 %s, v%d, s[%d:%d], s%d offen" % (vr(vQ, 4), vLo, sQ, sQ + 3, sT2))
    a("buffer_load_dwordx4 %s, v%d, s[%d:%d], s%d offen offset:1024" % (vr(vQ + 4, 4), vLo, sQ, sQ + 3, sT2))
    srd(a, sO, 4, 2048, WS_OF)
    a("s_lshl_b32 s%d, s%d, 15" % (sT, sT))
    srd_add(a, sO, sT)
    a("s_lshl_b32 s%d, s%d, 11" % (sT, sHead))
    srd_add(a, sO, sT)
    a("s_lshl_b32 s%d, s%d, 5" % (sT, sHalf))
    a("s_add_u32 s%d, s%d, s%d" % (sT, sT, sQb))
    a("s_lshl_b32 s%d, s%d, 11" % (sSo, sT))
    a("s_lshl_b32 s%d, s%d, 14" % (sT, sHalf))
    a("s_lshl_b32 s%d, s%d, 12" % (sM, sQb))
    a("s_add_u32 s%d, s%d, s%d" % (sM, sM, sT))
    a("v_add_u32 v%d, s%d, v%d" % (vAc, sT, vLo))
    a("v_add_u32 v%d, %d, v%d" % (vAn, SLOT, vAc))

    def issue():
        a("s_mov_b32 m0, s%d" % sM)
        a("buffer_load_dwordx4 v%d, s[%d:%d], s%d offen lds" % (vLo, sK, sK + 3, sSo))
        a("buffer_load_dwordx4 v%d, s[%d:%d], s%d offen offset:1024 lds" % (vLo, sK, sK + 3, sSo))
        a("s_add_u32 m0, s%d, 2048" % sM)
        a("buffer_load_dwordx4 v%d, s[%d:%d], s%d offen lds" % (vLo, sV, sV + 3, sSo))
        a("buffer_load_dwordx4 v%d, s[%d:%d], s%d offen offset:1024 lds" % (vLo, sV, sV + 3, sSo))
        a("s_add_u32 s%d, s%d, 8192" % (sSo, sSo))
        a("s_add_u32 s%d, s%d, %d" % (sM, sM, SLOT))
        a("s_and_b32 s%d, s%d, %d" % (sM, sM, 4 * SLOT - 1))

    for _ in range(3):
        issue()
    fK = [12, 20]
    fV = [28, 36]
    Sb = [44, 60]
    P = 76
    O = 84
    for r in range(16):
        a("v_mov_b32 v%d, 0" % (O + r))
    a("s_mov_b32 s%d, 0" % sSt)
    a("s_waitcnt vmcnt(8)")
    a("s_barrier")

    def rdK(buf, areg, t):
        a("ds_read_b128 %s, v%d offset:%d" % (vr(fK[buf], 4), areg, t * 4096))
        a("ds_read_b128 %s, v%d offset:%d" % (vr(fK[buf] + 4, 4), areg, t * 4096 + 1024))

    def rdV(buf, areg, t):
        a("ds_read_b128 %s, v%d offset:%d" % (vr(fV[buf], 4), areg, t * 4096 + 2048))
        a("ds_read_b128 %s, v%d offset:%d" % (vr(fV[buf] + 4, 4), areg, t * 4096 + 3072))

    rdK(0, vAc, 0)
    rdK(1, vAc, 1)
    rdV(0, vAc, 0)
    a("s_waitcnt lgkmcnt(4)")
    a("%s %s, %s, %s, 0" % (MFMA, vr(Sb[0], 16), vr(fK[0], 4), vr(vQ, 4)))
    a("%s %s, %s, %s, %s" % (MFMA, vr(Sb[0], 16), vr(fK[0] + 4, 4), vr(vQ + 4, 4), vr(Sb[0], 16)))
    a("s_nop 7")
    a.label("attn_loop")
    for t in range(4):
        c, n = t & 1, (t + 1) & 1
        if t == 2:
            a("s_waitcnt vmcnt(4)")
            a("s_barrier")
            a("s_cmp_lt_u32 s%d, 5" % sSt)
            a("s_cselect_b32 s%d, 0x20000, 0" % (sK + 2))
            a("s_cselect_b32 s%d, 0x20000, 0" % (sV + 2))
            issue()
        rdK(c, vAc if t + 2 < 4 else vAn, (t + 2) & 3)
        rdV(n, vAc if t + 1 < 4 else vAn, (t + 1) & 3)
        a("s_waitcnt lgkmcnt(4)")
        Sc, Sn = Sb[c], Sb[n]
        a("%s %s, %s, %s, 0" % (MFMA, vr(Sn, 16), vr(fK[n], 4), vr(vQ, 4)))
        for r in range(0, 4):
            a("v_exp_f32 v%d, v%d" % (Sc + r, Sc + r))
        a("%s %s, %s, %s, %s" % (MFMA, vr(Sn, 16), vr(fK[n] + 4, 4), vr(vQ + 4, 4), vr(Sn, 16)))
        for r in range(4, 8):
            a("v_exp_f32 v%d, v%d" % (Sc + r, Sc + r))
        for r in range(0, 4):
            a("v_cvt_pk_bf16_f32 v%d, v%d, v%d" % (P + r, Sc + 2 * r, Sc + 2 * r + 1))
        for r in range(8, 10):
            a("v_exp_f32 v%d, v%d" % (Sc + r, Sc + r))
        a("%s %s, %s, %s, %s" % (MFMA, vr(O, 16), vr(fV[c], 4), vr(P, 4), vr(O, 16)))
        for r in range(10, 16):
            a("v_exp_f32 v%d, v%d" % (Sc + r, Sc + r))
        for r in range(4, 8):
            a("v_cvt_pk_bf16_f32 v%d, v%d, v%d" % (P + r, Sc + 2 * r, Sc + 2 * r + 1))
        if t == 3:
            a("v_mov_b32 v%d, v%d" % (vAc, vAn))
            a("v_add_u32 v%d, %d, v%d" % (vAn, SLOT, vAn))
            a("v_and_b32 v%d, %d, v%d" % (vAn, 4 * SLOT - 1, vAn))
            a("s_add_u32 s%d, s%d, 1" % (sSt, sSt))
            a("s_cmp_lt_u32 s%d, 8" % sSt)
        a("%s %s, %s, %s, %s" % (MFMA, vr(O, 16), vr(fV[c] + 4, 4), vr(P + 4, 4), vr(O, 16)))
    a("s_cbranch_scc1 attn_loop")
    vSa = 2
    a("s_lshl_b32 s%d, s%d, 12" % (sT, sQb))
    a("s_add_u32 s%d, s%d, %d" % (sT, sT, SCR))
    a("v_add_u32 v%d, s%d, v%d" % (vSa, sT, vLo))
    a("s_cmp_eq_u32 s%d, 0" % sHalf)
    a("s_cbranch_scc1 attn_lead")
    a("s_nop 7")
    for i in range(4):
        a("ds_write_b128 v%d, %s offset:%d" % (vSa, vr(O + 4 * i, 4), i * 1024))
    a("s_waitcnt vmcnt(0) lgkmcnt(0)")
    a("s_barrier")
    a("s_endpgm")
    a.label("attn_lead")
    a("s_waitcnt lgkmcnt(0)")
    a("s_barrier")
    T = 44
    for i in range(4):
        a("ds_read_b128 %s, v%d offset:%d" % (vr(T + 4 * i, 4), vSa, i * 1024))
    a("s_waitcnt lgkmcnt(0)")
    for r in range(16):
        a("v_add_f32 v%d, v%d, v%d" % (O + r, O + r, T + r))
    a.label("attn_norm")
    vL, vT, vBad = 60, 61, 62
    a("v_mov_b32 v%d, v%d" % (vL, O + 12))
    a("v_mov_b32 v%d, v%d" % (vT, O + 12))
    a("v_permlane32_swap_b32 v%d, v%d" % (vT, vL))
    a("v_rcp_f32 v%d, v%d" % (vT, vL))
    a("s_mov_b32 exec_lo, 0")
    for r in range(12, 16):
        a("v_mov_b32 v%d, 0" % (O + r))
    a("s_mov_b32 exec_lo, -1")
    a("v_max3_f32 v%d, |v%d|, |v%d|, |v%d|" % (vBad, O, O + 1, O + 2))
    for r in range(3, 15, 2):
        a("v_max3_f32 v%d, v%d, |v%d|, |v%d|" % (vBad, vBad, O + r, O + r + 1))
    a("v_max_f32 v%d, v%d, |v%d|" % (vBad, vBad, O + 15))
    a("v_mov_b32 v63, 0")
    for r in range(16):
        a("v_fmac_f32 v63, 0, v%d" % (O + r))
    for r in range(16):
        a("v_mul_f32 v%d, v%d, v%d" % (O + r, O + r, vT))
    a("s_mov_b32 s%d, %s" % (sT, hx(f2u(2.0 ** 60))))
    a("s_mov_b32 s%d, %s" % (sT2, hx(f2u(2.0 ** -60))))
    a("v_cmp_nle_f32 s[36:37], v%d, s%d" % (vL, sT))
    a("v_cmp_nge_f32 s[38:39], v%d, s%d" % (vL, sT2))
    a("v_cmp_neq_f32 vcc, 0, v63")
    a("s_or_b64 s[36:37], s[36:37], s[38:39]")
    a("s_or_b64 s[36:37], s[36:37], vcc")
    a("s_cmp_eq_u32 s%d, 8" % sSt)
    a("s_cselect_b64 s[36:37], s[36:37], 0")
    a("s_cmp_lg_u64 s[36:37], 0")
    a("s_cbranch_scc1 attn_slow")
    for r in range(8):
        a("v_cvt_pk_bf16_f32 v%d, v%d, v%d" % (P + r, O + 2 * r, O + 2 * r + 1))
    a("buffer_store_dwordx4 %s, v%d, s[%d:%d], 0 offen" % (vr(P, 4), vLo, sO, sO + 3))
    a("buffer_store_dwordx4 %s, v%d, s[%d:%d], 0 offen offset:1024" % (vr(P + 4, 4), vLo, sO, sO + 3))
    a.label("attn_done")
    a("s_endpgm")
    a.label("attn_slow")
    a("s_mov_b32 s%d, 9" % sSt)
    a("s_mov_b32 s%d, 0x20000" % (sK + 2))
    a("s_mov_b32 s%d, 0x20000" % (sV + 2))
    a("s_mov_b32 exec_lo, 0")
    a("v_mov_b32 v%d, 0" % (vQ + 6))
    a("s_mov_b32 exec_lo, -1")
    vMx = 60
    a("v_mov_b32 v%d, 0xff800000" % vMx)
    a("s_mov_b32 s%d, 0" % sSo)
    a.label("attn_slow1")
    a("buffer_load_dwordx4 %s, v%d, s[%d:%d], s%d offen" % (vr(fK[0], 4), vLo, sK, sK + 3, sSo))
    a("buffer_load_dwordx4 %s, v%d, s[%d:%d], s%d offen offset:1024" % (vr(fK[0] + 4, 4), vLo, sK, sK + 3, sSo))
    a("s_waitcnt vmcnt(0)")
    a("%s %s, %s, %s, 0" % (MFMA, vr(Sb[0], 16), vr(fK[0], 4), vr(vQ, 4)))
    a("%s %s, %s, %s, %s" % (MFMA, vr(Sb[0], 16), vr(fK[0] + 4, 4), vr(vQ + 4, 4), vr(Sb[0], 16)))
    for r in range(0, 16, 2):
        a("v_max3_f32 v%d, v%d, v%d, v%d" % (vMx, vMx, Sb[0] + r, Sb[0] + r + 1))
    a("s_add_u32 s%d, s%d, 2048" % (sSo, sSo))
    a("s_cmp_lt_u32 s%d, 0x20000" % sSo)
    a("s_cbranch_scc1 attn_slow1")
    a("v_mov_b32 v61, v%d" % vMx)
    a("v_permlane32_swap_b32 v61, v%d" % vMx)
    a("v_max_f32 v%d, v%d, v61" % (vMx, vMx))
    for r in range(16):
        a("v_mov_b32 v%d, 0" % (O + r))
    a("s_mov_b32 s%d, 0" % sSo)
    a.label("attn_slow2")
    a("buffer_load_dwordx4 %s, v%d, s[%d:%d], s%d offen" % (vr(fK[0], 4), vLo, sK, sK + 3, sSo))
    a("buffer_load_dwordx4 %s, v%d, s[%d:%d], s%d offen offset:1024" % (vr(fK[0] + 4, 4), vLo, sK, sK + 3, sSo))
    a("buffer_load_dwordx4 %s, v%d, s[%d:%d], s%d offen" % (vr(fV[0], 4), vLo, sV, sV + 3, sSo))
    a("buffer_load_dwordx4 %s, v%d, s[%d:%d], s%d offen offset:1024" % (vr(fV[0] + 4, 4), vLo, sV, sV + 3, sSo))
    a("s_waitcnt vmcnt(0)")
    a("%s %s, %s, %s, 0" % (MFMA, vr(Sb[0], 16), vr(fK[0], 4), vr(vQ, 4)))
    a("%s %s, %s, %s, %s" % (MFMA, vr(Sb[0], 16), vr(fK[0] + 4, 4), vr(vQ + 4, 4), vr(Sb[0], 16)))
    for r in range(16):
        a("v_sub_f32 v%d, v%d, v%d" % (Sb[0] + r, Sb[0] + r, vMx))
    for r in range(16):
        a("v_exp_f32 v%d, v%d" % (Sb[0] + r, Sb[0] + r))
    for r in range(8):
        a("v_cvt_pk_bf16_f32 v%d, v%d, v%d" % (P + r, Sb[0] + 2 * r, Sb[0] + 2 * r + 1))
    a("%s %s, %s, %s, %s" % (MFMA, vr(O, 16), vr(fV[0], 4), vr(P, 4), vr(O, 16)))
    a("%s %s, %s, %s, %s" % (MFMA, vr(O, 16), vr(fV[0] + 4, 4), vr(P + 4, 4), vr(O, 16)))
    a("s_add_u32 s%d, s%d, 2048" % (sSo, sSo))
    a("s_cmp_lt_u32 s%d, 0x20000" % sSo)
    a("s_cbranch_scc1 attn_slow2")
    a("s_nop 15")
    a("s_branch attn_norm")
    return a, 256, 512, SCR + 16384


def tile_decode(a, sTp, sNt, sT):
    a("s_and_b32 s%d, s2, 7" % sT)
    a("s_lshl_b32 s%d, s%d, 2" % (sT, sT))
    a("s_bfe_u32 s%d, s2, 0x20003" % sTp)
    a("s_add_u32 s%d, s%d, s%d" % (sTp, sTp, sT))
    a("s_lshr_b32 s%d, s2, 5" % sNt)


def wfrag_addr(a, v0t, v1t, sBase, t1, t2):
    a("v_lshrrev_b32 v%d, 5, v0" % t1)
    a("v_lshlrev_b32 v%d, 2, v%d" % (t1, t1))
    a("v_bfe_u32 v%d, v0, 2, 2" % t2)
    a("v_add_u32 v%d, v%d, v%d" % (t1, t1, t2))
    a("v_lshlrev_b32 v%d, 7, v%d" % (v0t, t1))
    a("v_bfe_u32 v%d, v0, 3, 1" % t1)
    a("v_lshl_add_u32 v%d, v%d, 6, v%d" % (v0t, t1, v0t))
    a("v_bfe_u32 v%d, v0, 4, 1" % t1)
    a("v_lshl_add_u32 v%d, v%d, 5, v%d" % (v0t, t1, v0t))
    a("v_and_b32 v%d, 3, v0" % t1)
    a("v_lshl_add_u32 v%d, v%d, 3, v%d" % (v0t, t1, v0t))
    a("v_add_u32 v%d, s%d, v%d" % (v0t, sBase, v0t))
    a("v_xor_b32 v%d, 64, v%d" % (v1t, v0t))


def wdma_off(a, vd, sCol, t1, t2):
    a("v_lshrrev_b32 v%d, 3, v0" % t1)
    a("v_mul_u32_u24 v%d, 896, v%d" % (vd, t1))
    a("v_bfe_u32 v%d, v0, 4, 1" % t1)
    a("v_lshlrev_b32 v%d, 2, v%d" % (t1, t1))
    a("v_and_b32 v%d, 7, v0" % t2)
    a("v_xor_b32 v%d, v%d, v%d" % (t1, t1, t2))
    a("v_lshl_add_u32 v%d, v%d, 4, v%d" % (vd, t1, vd))
    a("v_add_u32 v%d, s%d, v%d" % (vd, sCol, vd))


def reduce4(a, acc, RED, sWave, vLo, vA, T, sT, lab):
    for w in range(4):
        a.label("%s_red%d" % (lab, w)) if w else None
        if w < 3:
            a("s_cmp_lg_u32 s%d, %d" % (sWave, w))
            a("s_cbranch_scc1 %s_red%d" % (lab, w + 1))
        a("v_add_u32 v%d, %d, v%d" % (vA, RED, vLo))
        for k in range(1, 4):
            dst = w ^ k
            for i in range(4):
                a("ds_write_b128 v%d, %s offset:%d" % (vA, vr(acc + 16 * dst + 4 * i, 4), dst * 12288 + (k - 1) * 4096 + i * 1024))
        if w:
            for r in range(16):
                a("v_mov_b32 v%d, v%d" % (acc + r, acc + 16 * w + r))
        if w < 3:
            a("s_branch %s_redj" % lab)
    a.label("%s_redj" % lab)
    a("s_mul_i32 s%d, s%d, 12288" % (sT, sWave))
    a("v_add_u32 v%d, s%d, v%d" % (vA, sT, vA))
    a("s_waitcnt lgkmcnt(0)")
    a("s_barrier")
    for k in range(3):
        for i in range(4):
            a("ds_read_b128 %s, v%d offset:%d" % (vr(T + 16 * k + 4 * i, 4), vA, k * 4096 + i * 1024))
    for k in range(3):
        a("s_waitcnt lgkmcnt(%d)" % (8 - 4 * k))
        for r in range(16):
            a("v_add_f32 v%d, v%d, v%d" % (acc + r, acc + r, T + 16 * k + r))


def k_oproj():
    a = Asm()
    WREG = 15360
    RED = 4 * WREG
    sW, sX, sA, sO, sS = 8, 12, 16, 20, 24
    sWave, sTp, sNt, sT, sT2, sM = 28, 29, 30, 31, 32, 33
    a("s_cmp_ge_u32 s2, 252")
    a("s_cbranch_scc1 oproj_done")
    a("s_load_dwordx2 s[4:5], s[0:1], 72")
    a("s_cmp_ge_u32 s2, 224")
    a("s_cbranch_scc1 colsum")
    a("s_load_dwordx2 s[6:7], s[0:1], 0")
    a("s_load_dwordx2 s[34:35], s[0:1], 16")
    a("v_lshrrev_b32 v1, 6, v0")
    a("v_and_b32 v0, 63, v0")
    a("v_readfirstlane_b32 s%d, v1" % sWave)
    tile_decode(a, sTp, sNt, sT)
    vLo, vWo, vWa0, vWa1, vXo, vA, t1, t2 = 1, 2, 3, 4, 5, 6, 7, 8
    a("v_lshlrev_b32 v%d, 4, v0" % vLo)
    a("s_lshl_b32 s%d, s%d, 7" % (sT, sNt))
    wdma_off(a, vWo, sT, t1, t2)
    a("s_mul_i32 s%d, s%d, %d" % (sM, sWave, WREG))
    wfrag_addr(a, vWa0, vWa1, sM, t1, t2)
    a("v_and_b32 v%d, 31, v0" % t1)
    a("v_mul_u32_u24 v%d, 896, v%d" % (vXo, t1))
    a("v_lshrrev_b32 v%d, 5, v0" % t1)
    a("v_lshl_add_u32 v%d, v%d, 3, v%d" % (vXo, t1, vXo))
    a("s_waitcnt lgkmcnt(0)")
    srd(a, sW, 34, 448 * 896)
    srd(a, sA, 4, 65536, WS_OF)
    a("s_lshl_b32 s%d, s%d, 16" % (sT, sTp))
    srd_add(a, sA, sT)
    fX = 16
    a("s_lshl_b32 s%d, s%d, 13" % (sT, sWave))
    a("s_add_u32 s%d, s%d, 4096" % (sT2, sT))
    for b in range(2):
        for s in range(8):
            a("buffer_load_dwordx4 %s, v%d, s[%d:%d], s%d offen offset:%d" % (vr(fX + 32 * b + 4 * s, 4), vLo, sA, sA + 3, sT if s < 4 else sT2, (s & 3) * 1024))
        if b == 0:
            a("s_add_u32 s%d, s%d, 32768" % (sT, sT))
            a("s_add_u32 s%d, s%d, 32768" % (sT2, sT2))
    a("s_mul_i32 s%d, s%d, %d" % (sT, sWave, 112 * 896))
    for i in range(15):
        a("s_add_u32 m0, s%d, %d" % (sM, i * 1024))
        a("buffer_load_dwordx4 v%d, s[%d:%d], s%d offen lds" % (vWo, sW, sW + 3, sT))
        if i < 14:
            a("s_add_u32 s%d, s%d, %d" % (sT, sT, 8 * 896))
    sTb, sCt = 36, 37
    a("s_lshr_b32 s%d, s%d, 1" % (sT, sWave))
    a("s_lshl_b32 s%d, s%d, 1" % (sTb, sTp))
    a("s_add_u32 s%d, s%d, s%d" % (sTb, sTb, sT))
    a("s_and_b32 s%d, s%d, 1" % (sT, sWave))
    a("s_lshl_b32 s%d, s%d, 1" % (sCt, sNt))
    a("s_add_u32 s%d, s%d, s%d" % (sCt, sCt, sT))
    srd(a, sX, 6, S * 896)
    a("s_mul_i32 s%d, s%d, %d" % (sT, sTb, 32 * 896))
    a("s_lshl_b32 s%d, s%d, 6" % (sT2, sCt))
    a("s_add_u32 s%d, s%d, s%d" % (sT, sT, sT2))
    vX = 80
    for i in range(4):
        a("buffer_load_dwordx2 %s, v%d, s[%d:%d], s%d offen offset:%d" % (vr(vX + 2 * i, 2), vXo, sX, sX + 3, sT, i * 16))
    srd(a, sO, 4, 2048, WS_HF)
    a("s_mul_i32 s%d, s%d, 28672" % (sT, sTb))
    srd_add(a, sO, sT)
    a("s_lshl_b32 s%d, s%d, 11" % (sT, sCt))
    srd_add(a, sO, sT)
    srd(a, sS, 4, 256, WS_ST)
    a("s_lshl_b32 s%d, s%d, 14" % (sT, sCt))
    srd_add(a, sS, sT)
    a("s_lshl_b32 s%d, s%d, 8" % (sT, sTb))
    srd_add(a, sS, sT)
    acc = 88
    fW = [152, 160]
    for r in range(64):
        a("v_mov_b32 v%d, 0" % (acc + r))

    def rd(s):
        hh, j = divmod(s, 2)
        for t in range(2):
            for q in range(2):
                a("ds_read_b64_tr_b16 %s, v%d offset:%d" % (vr(fW[s & 1] + 4 * t + 2 * q, 2), (vWa0, vWa1)[t], (28 * hh + 16 * j + 8 * q) * 128))

    a("s_waitcnt vmcnt(4)")
    rd(0)
    for s in range(8):
        if s < 7:
            rd(s + 1)
            a("s_waitcnt lgkmcnt(4)")
        else:
            a("s_waitcnt lgkmcnt(0)")
        for b in range(2):
            for t in range(2):
                c = acc + 16 * (t + 2 * b)
                a("%s %s, %s, %s, %s" % (MFMA, vr(c, 16), vr(fW[s & 1] + 4 * t, 4), vr(fX + 32 * b + 4 * s, 4), vr(c, 16)))
    a("s_nop 15")
    reduce4(a, acc, RED, sWave, vLo, vA, 16, sT, "oproj")
    a("s_waitcnt vmcnt(0)")
    for i in range(8):
        a("v_lshlrev_b32 v%d, 16, v%d" % (t1, vX + i))
        a("v_and_b32 v%d, 0xffff0000, v%d" % (t2, vX + i))
        a("v_add_f32 v%d, v%d, v%d" % (t1, t1, acc + 2 * i))
        a("v_add_f32 v%d, v%d, v%d" % (t2, t2, acc + 2 * i + 1))
        a("v_cvt_pk_bf16_f32 v%d, v%d, v%d" % (16 + i, t1, t2))
    a("buffer_store_dwordx4 %s, v%d, s[%d:%d], 0 offen" % (vr(16, 4), vLo, sO, sO + 3))
    a("buffer_store_dwordx4 %s, v%d, s[%d:%d], 0 offen offset:1024" % (vr(20, 4), vLo, sO, sO + 3))
    a("s_mov_b32 s%d, 0x3f803f80" % sT)
    a("v_mov_b32 v24, 0")
    a("v_mov_b32 v25, 0")
    for i in range(8):
        a("v_dot2c_f32_bf16 v24, s%d, v%d" % (sT, 16 + i))
        a("v_dot2c_f32_bf16 v25, v%d, v%d" % (16 + i, 16 + i))
    half_sum(a, 24, t1)
    half_sum(a, 25, t1)
    a("v_lshlrev_b32 v%d, 3, v0" % t1)
    a("buffer_store_dwordx2 v[24:25], v%d, s[%d:%d], 0 offen" % (t1, sS, sS + 3))
    a.label("oproj_done")
    a("s_endpgm")
    a.label("colsum")
    a("s_load_dwordx4 s[36:39], s[0:1], 32")
    a("s_sub_u32 s%d, s2, 224" % sT)
    a("s_cmp_ge_u32 s%d, 14" % sT)
    a("s_cselect_b32 s%d, 14, 0" % sT2)
    a("s_sub_u32 s%d, s%d, s%d" % (sNt, sT, sT2))
    a("v_lshrrev_b32 v1, 4, v0")
    a("v_mul_u32_u24 v2, 3584, v1")
    a("v_and_b32 v3, 15, v0")
    a("v_lshl_add_u32 v2, v3, 4, v2")
    a("s_waitcnt lgkmcnt(0)")
    a("s_cmp_ge_u32 s%d, 14" % sT)
    a("s_cselect_b32 s%d, s38, s36" % sW)
    a("s_cselect_b32 s%d, s39, s37" % (sW + 1))
    a("s_mov_b32 s%d, %d" % (sW + 2, 448 * 3584))
    a("s_mov_b32 s%d, 0x20000" % (sW + 3))
    srd(a, sO, 4, 2 * 1792 * 4, WS_CS)
    a("s_lshl_b32 s%d, s%d, 8" % (sT2, sNt))
    for i in range(28):
        a("buffer_load_dwordx4 %s, v2, s[%d:%d], s%d offen" % (vr(16 + 4 * i, 4), sW, sW + 3, sT2))
        if i < 27:
            a("s_add_u32 s%d, s%d, %d" % (sT2, sT2, 16 * 3584))
    for r in range(8):
        a("v_mov_b32 v%d, 0" % (8 + r))
    for i in range(28):
        a("s_waitcnt vmcnt(%d)" % (27 - i))
        for d in range(4):
            a("v_lshlrev_b32 v4, 16, v%d" % (16 + 4 * i + d))
            a("v_and_b32 v5, 0xffff0000, v%d" % (16 + 4 * i + d))
            a("v_add_f32 v%d, v%d, v4" % (8 + 2 * d, 8 + 2 * d))
            a("v_add_f32 v%d, v%d, v5" % (9 + 2 * d, 9 + 2 * d))
    a("v_lshlrev_b32 v4, 5, v0")
    a("ds_write_b128 v4, v[8:11]")
    a("ds_write_b128 v4, v[12:15] offset:16")
    a("s_waitcnt lgkmcnt(0)")
    a("s_barrier")
    a("v_lshlrev_b32 v4, 2, v0")
    a("v_and_b32 v4, 511, v4")
    for i in range(16):
        a("ds_read_b32 v%d, v4 offset:%d" % (16 + i, i * 512))
    a("s_waitcnt lgkmcnt(0)")
    for i in range(1, 16):
        a("v_add_f32 v16, v16, v%d" % (16 + i))
    a("s_mul_i32 s%d, s%d, 512" % (sT2, sT))
    a("v_cmp_gt_u32 vcc, 128, v0")
    a("s_and_saveexec_b64 s[40:41], vcc")
    a("s_cbranch_execz colsum_done")
    a("buffer_store_dword v16, v4, s[%d:%d], s%d offen" % (sO, sO + 3, sT2))
    a.label("colsum_done")
    a("s_endpgm")
    return a, 252, 256, RED + 49152


def k_down():
    a = Asm()
    WREG = 24576
    RED = 4 * WREG
    sW, sA, sO, sH = 8, 12, 16, 20
    sWave, sTp, sNt, sT, sT2, sM, sWo, sAo, sAo2 = 28, 29, 30, 31, 32, 33, 36, 37, 38
    a("s_cmp_ge_u32 s2, 224")
    a("s_cbranch_scc1 down_done")
    a("s_load_dwordx2 s[4:5], s[0:1], 72")
    a("s_load_dwordx4 s[24:27], s[0:1], 48")
    a("v_lshrrev_b32 v1, 6, v0")
    a("v_and_b32 v0, 63, v0")
    a("v_readfirstlane_b32 s%d, v1" % sWave)
    tile_decode(a, sTp, sNt, sT)
    vLo, vWo, vWa0, vWa1, vXo, vA, t1, t2, vLo2 = 1, 2, 3, 4, 5, 6, 7, 8, 9
    a("v_lshlrev_b32 v%d, 4, v0" % vLo)
    a("v_add_u32 v%d, %d, v%d" % (vLo2, 112 * 1024, vLo))
    a("s_lshl_b32 s%d, s%d, 7" % (sT, sNt))
    wdma_off(a, vWo, sT, t1, t2)
    a("s_mul_i32 s%d, s%d, %d" % (sM, sWave, WREG))
    wfrag_addr(a, vWa0, vWa1, sM, t1, t2)
    a("v_and_b32 v%d, 31, v0" % t1)
    a("v_mul_u32_u24 v%d, 896, v%d" % (vXo, t1))
    a("v_lshrrev_b32 v%d, 5, v0" % t1)
    a("v_lshl_add_u32 v%d, v%d, 4, v%d" % (vXo, t1, vXo))
    a("s_waitcnt lgkmcnt(0)")
    srd(a, sW, 24, 1792 * 896)
    srd(a, sA, 4, 2 * 112 * 1024, WS_GF)
    a("s_mul_i32 s%d, s%d, %d" % (sT, sTp, 2 * 112 * 1024))
    srd_add(a, sA, sT)
    a("s_mul_i32 s%d, s%d, %d" % (sWo, sWave, 448 * 896))
    a("s_mul_i32 s%d, s%d, %d" % (sAo, sWave, 28 * 1024))
    fX = [16, 48, 80]

    def issue(c):
        sl = c % 3
        for s in range(4):
            for b in range(2):
                a("buffer_load_dwordx4 %s, v%d, s[%d:%d], s%d offen offset:%d" % (vr(fX[sl] + 16 * b + 4 * s, 4), (vLo, vLo2)[b], sA, sA + 3, sAo, s * 1024))
        a("s_add_u32 s%d, s%d, 4096" % (sAo, sAo))
        for i in range(8):
            a("s_add_u32 m0, s%d, %d" % (sM, sl * 8192 + i * 1024))
            a("buffer_load_dwordx4 v%d, s[%d:%d], s%d offen lds" % (vWo, sW, sW + 3, sWo))
            a("s_add_u32 s%d, s%d, %d" % (sWo, sWo, 8 * 896))

    sTb, sCt = 39, 40
    a("s_lshr_b32 s%d, s%d, 1" % (sT, sWave))
    a("s_lshl_b32 s%d, s%d, 1" % (sTb, sTp))
    a("s_add_u32 s%d, s%d, s%d" % (sTb, sTb, sT))
    a("s_and_b32 s%d, s%d, 1" % (sT, sWave))
    a("s_lshl_b32 s%d, s%d, 1" % (sCt, sNt))
    a("s_add_u32 s%d, s%d, s%d" % (sCt, sCt, sT))
    srd(a, sH, 4, 2048, WS_HF)
    a("s_mul_i32 s%d, s%d, 28672" % (sT, sTb))
    srd_add(a, sH, sT)
    a("s_lshl_b32 s%d, s%d, 11" % (sT, sCt))
    srd_add(a, sH, sT)
    vH = 192
    a("buffer_load_dwordx4 %s, v%d, s[%d:%d], 0 offen" % (vr(vH, 4), vLo, sH, sH + 3))
    a("buffer_load_dwordx4 %s, v%d, s[%d:%d], 0 offen offset:1024" % (vr(vH + 4, 4), vLo, sH, sH + 3))
    for c in range(3):
        issue(c)
    srd(a, sO, 26, S * 896)
    acc = 112
    fW = [176, 184]
    for r in range(64):
        a("v_mov_b32 v%d, 0" % (acc + r))

    def rd(g):
        c, s = divmod(g, 4)
        for t in range(2):
            for q in range(2):
                a("ds_read_b64_tr_b16 %s, v%d offset:%d" % (vr(fW[g & 1] + 4 * t + 2 * q, 2), (vWa0, vWa1)[t], (c % 3) * 8192 + (16 * s + 8 * q) * 128))

    a("s_waitcnt vmcnt(32)")
    rd(0)
    for g in range(28):
        c, s = divmod(g, 4)
        if g < 27:
            if s == 3:
                a("s_waitcnt vmcnt(%d)" % (16 * (min(6, c + 2) - (c + 1))))
            rd(g + 1)
            a("s_waitcnt lgkmcnt(4)")
        else:
            a("s_waitcnt lgkmcnt(0)")
        for b in range(2):
            for t in range(2):
                cc = acc + 16 * (t + 2 * b)
                a("%s %s, %s, %s, %s" % (MFMA, vr(cc, 16), vr(fW[g & 1] + 4 * t, 4), vr(fX[c % 3] + 16 * b + 4 * s, 4), vr(cc, 16)))
        if s == 3 and c + 3 <= 6:
            issue(c + 3)
    a("s_nop 15")
    reduce4(a, acc, RED, sWave, vLo, vA, 16, sT, "down")
    for i in range(8):
        a("v_lshlrev_b32 v%d, 16, v%d" % (t1, vH + i))
        a("v_and_b32 v%d, 0xffff0000, v%d" % (t2, vH + i))
        a("v_add_f32 v%d, v%d, v%d" % (t1, t1, acc + 2 * i))
        a("v_add_f32 v%d, v%d, v%d" % (t2, t2, acc + 2 * i + 1))
        a("v_cvt_pk_bf16_f32 v%d, v%d, v%d" % (16 + i, t1, t2))
    for j in range(2):
        a("v_permlane32_swap_b32 v%d, v%d" % (16 + 4 * j, 16 + 4 * j + 2))
        a("v_permlane32_swap_b32 v%d, v%d" % (16 + 4 * j + 1, 16 + 4 * j + 3))
    a("s_mul_i32 s%d, s%d, %d" % (sT, sTb, 32 * 896))
    a("s_lshl_b32 s%d, s%d, 6" % (sT2, sCt))
    a("s_add_u32 s%d, s%d, s%d" % (sT, sT, sT2))
    for j in range(2):
        a("buffer_store_dwordx4 %s, v%d, s[%d:%d], s%d offen offset:%d" % (vr(16 + 4 * j, 4), vXo, sO, sO + 3, sT, j * 32))
    a.label("down_done")
    a("s_endpgm")
    return a, 224, 256, RED + 49152


def k_gate():
    a = Asm()
    MAT = 14336 + 128
    SLOT = 28800
    NSLOT = 5
    sW, sA, sO, sS, sC = 8, 12, 16, 20, 24
    sWave, sFg, sTg, sT, sT2, sM, sTb = 28, 29, 30, 31, 32, 33, 34
    a("s_cmp_ge_u32 s2, 256")
    a("s_cbranch_scc1 gate_done")
    a("s_load_dwordx2 s[4:5], s[0:1], 72")
    a("s_load_dwordx4 s[36:39], s[0:1], 32")
    a("v_lshrrev_b32 v1, 6, v0")
    a("v_and_b32 v0, 63, v0")
    a("v_readfirstlane_b32 s%d, v1" % sWave)
    a("s_and_b32 s%d, s2, 3" % sT)
    a("s_lshl_b32 s%d, s%d, 2" % (sT, sT))
    a("s_bfe_u32 s%d, s2, 0x20003" % sT2)
    a("s_add_u32 s%d, s%d, s%d" % (sFg, sT, sT2))
    a("s_bfe_u32 s%d, s2, 0x10002" % sT)
    a("s_lshl_b32 s%d, s%d, 3" % (sT, sT))
    a("s_lshr_b32 s%d, s2, 5" % sT2)
    a("s_add_u32 s%d, s%d, s%d" % (sTg, sT, sT2))
    a("s_lshl_b32 s%d, s%d, 2" % (sTb, sTg))
    a("s_add_u32 s%d, s%d, s%d" % (sTb, sTb, sWave))
    vLo, vWa, vSo, vCo, t1, t2, t3 = 1, 2, 3, 4, 5, 6, 7
    vWo = list(range(8, 15))
    a("v_lshlrev_b32 v%d, 4, v0" % vLo)
    a("v_and_b32 v%d, 31, v0" % t1)
    a("v_lshrrev_b32 v%d, 5, v0" % t2)
    a("v_mul_u32_u24 v%d, %d, v%d" % (vSo, 7 * 16384, t2))
    a("v_lshl_add_u32 v%d, v%d, 3, v%d" % (vSo, t1, vSo))
    a("v_lshlrev_b32 v%d, 4, v%d" % (vCo, t2))
    a("s_and_b32 s%d, s%d, 1" % (sT, sWave))
    a("s_mul_i32 s%d, s%d, 448" % (sT, sT))
    a("s_mul_i32 s%d, s%d, 224" % (sT2, sFg))
    for i in range(7):
        a("v_add_u32 v%d, s%d, v0" % (t1, sT))
        if i:
            a("v_add_u32 v%d, %d, v%d" % (t1, 64 * i, t1))
        a("v_mul_u32_u24 v%d, 37450, v%d" % (t2, t1))
        a("v_lshrrev_b32 v%d, 19, v%d" % (t2, t2))
        a("v_mul_u32_u24 v%d, 14, v%d" % (t3, t2))
        a("v_sub_u32 v%d, v%d, v%d" % (t1, t1, t3))
        a("v_mul_u32_u24 v%d, 3584, v%d" % (vWo[i], t2))
        a("v_lshl_add_u32 v%d, v%d, 4, v%d" % (vWo[i], t1, vWo[i]))
        a("v_add_u32 v%d, s%d, v%d" % (vWo[i], sT2, vWo[i]))
    a("v_lshrrev_b32 v%d, 5, v0" % t1)
    a("v_lshlrev_b32 v%d, 2, v%d" % (t1, t1))
    a("v_bfe_u32 v%d, v0, 2, 2" % t2)
    a("v_add_u32 v%d, v%d, v%d" % (t1, t1, t2))
    a("v_mul_u32_u24 v%d, 224, v%d" % (vWa, t1))
    a("v_bfe_u32 v%d, v0, 4, 1" % t1)
    a("v_mul_u32_u24 v%d, %d, v%d" % (t1, MAT, t1))
    a("v_and_b32 v%d, 3, v0" % t2)
    a("v_lshlrev_b32 v%d, 3, v%d" % (t2, t2))
    a("v_add3_u32 v%d, v%d, v%d, v%d" % (vWa, vWa, t1, t2))
    a("s_waitcnt lgkmcnt(0)")
    a("s_cmp_ge_u32 s%d, 2" % sWave)
    a("s_cselect_b32 s%d, s38, s36" % sW)
    a("s_cselect_b32 s%d, s39, s37" % (sW + 1))
    a("s_cselect_b32 s%d, %d, 0" % (sM, MAT))
    a("s_mov_b32 s%d, %d" % (sW + 2, 448 * 3584))
    a("s_mov_b32 s%d, 0x20000" % (sW + 3))
    a("s_and_b32 s%d, s%d, 1" % (sT, sWave))
    a("s_mul_i32 s%d, s%d, 7168" % (sT, sT))
    a("s_add_u32 s%d, s%d, s%d" % (sM, sM, sT))
    srd(a, sS, 4, 14 * 16384, WS_ST)
    srd(a, sC, 4, 2 * 1792 * 4, WS_CS)
    srd(a, sA, 4, 28672, WS_HF)
    a("s_mul_i32 s%d, s%d, 28672" % (sT, sTb))
    srd_add(a, sA, sT)
    srd(a, sO, 4, 7168, WS_GF)
    a("s_mul_i32 s%d, s%d, %d" % (sT, sTb, 112 * 1024))
    srd_add(a, sO, sT)
    a("s_mul_i32 s%d, s%d, 7168" % (sT, sFg))
    srd_add(a, sO, sT)
    vS = 16
    a("s_lshl_b32 s%d, s%d, 8" % (sT, sTb))
    for i in range(7):
        a("buffer_load_dwordx2 %s, v%d, s[%d:%d], s%d offen" % (vr(vS + 2 * i, 2), vSo, sS, sS + 3, sT))
        if i < 6:
            a("s_add_u32 s%d, s%d, 16384" % (sT, sT))
    acc = 32
    a("s_mul_i32 s%d, s%d, 448" % (sT, sFg))
    a("s_add_u32 s%d, s%d, 7168" % (sT2, sT))
    for tl in range(7):
        for m in range(2):
            for q in range(2):
                a("buffer_load_dwordx4 %s, v%d, s[%d:%d], s%d offen offset:%d" % (vr(acc + 16 * tl + 8 * m + 4 * q, 4), vCo, sC, sC + 3, (sT, sT2)[m], tl * 64 + q * 32))

    def issue(st):
        base = (st % NSLOT) * SLOT
        a("s_mov_b32 s%d, %d" % (sT, st * 64 * 3584))
        for i in range(7):
            a("s_add_u32 m0, s%d, %d" % (sM, base + i * 1024))
            a("buffer_load_dwordx4 v%d, s[%d:%d], s%d offen lds" % (vWo[i], sW, sW + 3, sT))

    fX = 0
    issue(0)
    for s in range(0, 8):
        a("s_mov_b32 s%d, %d" % (sT2, (s // 4) * 4096)) if s % 4 == 0 else None
        a("buffer_load_dwordx4 %s, v%d, s[%d:%d], s%d offen offset:%d" % (ar(fX + 4 * s, 4), vLo, sA, sA + 3, sT2, (s & 3) * 1024))
    issue(1)
    a("s_waitcnt vmcnt(50)")
    vMean, vVar, vC1 = 30, 31, 15
    for i in range(1, 7):
        a("v_add_f32 v%d, v%d, v%d" % (vS, vS, vS + 2 * i))
        a("v_add_f32 v%d, v%d, v%d" % (vS + 1, vS + 1, vS + 2 * i + 1))
    half_sum(a, vS, t1)
    half_sum(a, vS + 1, t1)
    a("v_mul_f32 v%d, %s, v%d" % (vMean, hx(f2u(-1.0 / D)), vS))
    a("v_mul_f32 v%d, %s, v%d" % (vVar, hx(f2u(1.0 / D)), vS + 1))
    a("v_fma_f32 v%d, -v%d, v%d, v%d" % (vVar, vMean, vMean, vVar))
    a("v_max_f32 v%d, 0, v%d" % (vVar, vVar))
    a("v_add_f32 v%d, %s, v%d" % (vVar, hx(f2u(EPS)), vVar))
    a("v_rsq_f32 v%d, v%d" % (vC1, vVar))
    a("v_mul_f32 v%d, %s, v%d" % (vC1, hx(f2u(-math.log2(math.e))), vC1))
    a("s_waitcnt vmcnt(22)")
    for s in range(8, 28):
        a("s_mov_b32 s%d, %d" % (sT2, (s // 4) * 4096)) if s % 4 == 0 else None
        a("buffer_load_dwordx4 %s, v%d, s[%d:%d], s%d offen offset:%d" % (ar(fX + 4 * s, 4), vLo, sA, sA + 3, sT2, (s & 3) * 1024))
    issue(2)
    issue(3)
    for r in range(112):
        a("v_mul_f32 v%d, v%d, v%d" % (acc + r, vMean, acc + r))
    fW = [144, 172]
    cur_base = [0]
    waits = {0: 41, 1: 34 + 7, 2: 7 + 7 + 7, 3: 21, 4: 14, 5: 7, 6: 0}

    def reads(g):
        st, ks = divmod(g, 4)
        for tl in range(7):
            for q in range(2):
                a("ds_read_b64_tr_b16 %s, v%d offset:%d" % (vr(fW[g & 1] + 4 * tl + 2 * q, 2), vWa, ks * 3584 + q * 1792 + tl * 32))

    def sync(st):
        a("s_waitcnt vmcnt(%d) lgkmcnt(0)" % waits[st])
        a("s_barrier")
        if st + 4 <= 6:
            issue(st + 4)
        base = (st % NSLOT) * SLOT
        dlt = base - cur_base[0]
        if dlt:
            a("v_add_u32 v%d, %s, v%d" % (vWa, hx(dlt), vWa))
        cur_base[0] = base

    sync(0)
    reads(0)
    for g in range(28):
        if g + 1 < 28:
            if (g + 1) % 4 == 0:
                sync((g + 1) // 4)
                reads(g + 1)
            else:
                reads(g + 1)
                a("s_waitcnt lgkmcnt(14)")
        else:
            a("s_waitcnt lgkmcnt(0)")
        for tl in range(7):
            c = acc + 16 * tl
            a("%s %s, %s, %s, %s" % (MFMA, vr(c, 16), vr(fW[g & 1] + 4 * tl, 4), ar(fX + 4 * g, 4), vr(c, 16)))
    E = 144
    a("v_mov_b32 v16, v%d" % vC1)
    a("v_mov_b32 v17, v%d" % vC1)
    a("v_mov_b32 v18, v%d" % vVar)
    a("v_mov_b32 v19, v%d" % vVar)
    for tl in range(7):
        c = acc + 16 * tl
        e = E + 8 * (tl & 1)
        for p in range(4):
            a("v_pk_mul_f32 %s, %s, v[16:17]" % (vr(e + 2 * p, 2), vr(c + 2 * p, 2)))
        for r in range(8):
            a("v_exp_f32 v%d, v%d" % (e + r, e + r))
        for p in range(4):
            a("v_pk_mul_f32 %s, %s, %s" % (vr(c + 2 * p, 2), vr(c + 2 * p, 2), vr(c + 8 + 2 * p, 2)))
        for p in range(4):
            a("v_pk_fma_f32 %s, %s, v[18:19], v[18:19]" % (vr(e + 2 * p, 2), vr(e + 2 * p, 2)))
        for r in range(8):
            a("v_rcp_f32 v%d, v%d" % (e + r, e + r))
        for p in range(4):
            a("v_pk_mul_f32 %s, %s, %s" % (vr(c + 2 * p, 2), vr(c + 2 * p, 2), vr(e + 2 * p, 2)))
        for p in range(4):
            a("v_cvt_pk_bf16_f32 v%d, v%d, v%d" % (c + 8 + p, c + 2 * p, c + 2 * p + 1))
        if tl == 4:
            a("s_mov_b32 s%d, 4096" % sT)
        a("buffer_store_dwordx4 %s, v%d, s[%d:%d], %s offen offset:%d" % (vr(c + 8, 4), vLo, sO, sO + 3, "0" if tl < 4 else "s%d" % sT, (tl & 3) * 1024))
    a.label("gate_done")
    a("s_endpgm")
    return a, 256, 256, NSLOT * SLOT


def build(path):
    kernels = [("qkv_kernel", k_qkv), ("attn_kernel", k_attn), ("oproj_kernel", k_oproj), ("gate_kernel", k_gate), ("down_kernel", k_down)]
    ref = open("cdna_kernels/%s.s.ref" % NAME).read().split("\n")
    head = [l for l in ref if l.startswith(";") and "@launch" not in l and "Override launch" not in l and "grid=ceil" not in l]
    head = head[:12]
    launches, bodies, descs = [], [], []
    for name, fn in kernels:
        asm, grid, block, lds = fn()
        body, desc, info = kernel_text(name, asm)
        launches.append("; @launch kernel=%s grid=(%d,1,1) block=(%d,1,1) lds=%d" % (name, grid, block, lds))
        bodies.append(body)
        descs.append(".p2align 6\n" + desc)
        print(name, "vgpr/agpr/sgpr/pads", info, "lds", lds, file=sys.stderr)
    txt = "\n".join(head + launches) + "\n"
    txt += '.amdgcn_target "amdgcn-amd-amdhsa--gfx950"\n.text\n'
    txt += "".join(bodies)
    txt += '.section .rodata,"a"\n' + "".join(descs)
    open(path, "w").write(txt)


if __name__ == "__main__":
    build(sys.argv[1] if len(sys.argv) > 1 else "cdna_kernels/%s.s" % NAME)
```

```python
import math
import struct
import sys
from asmlib import Asm, vr, ar, sr, kernel_text

NAME = "sequential_preLN__mha_block__glu_gated_swiglu__prompt"
S, D, H, DH, F = 2048, 448, 16, 28, 1792
EPS = 1e-5
WS_QF = 0
WS_KF = 2 << 20
WS_VF = 4 << 20
WS_OF = 6 << 20
WS_HF = 8 << 20
WS_CS = 10 << 20
WS_CT = WS_CS + (1 << 16)
WS_GF = 12 << 20
WS_PROF = 24 << 20
MFMA = "v_mfma_f32_32x32x16_bf16"
PROF = False
OPT = {}

sWave, sXcd, sI = 3, 4, 5
sT, sT2, sT3, sT4 = 6, 7, 56, 57
PX, PWQKV, PWO, PW1, PW3, PW2, POUT, PDBG, PWS = 36, 38, 40, 44, 46, 48, 50, 52, 54
sCT = 60
SA, SB, SC, SD, SE, SF = 8, 12, 16, 20, 24, 28
sOnes = 58
sSpin = 59
LO = 1


def f2u(x):
    return struct.unpack("<I", struct.pack("<f", x))[0]


def hx(x):
    return "0x%x" % (x & 0xFFFFFFFF)


def srd(a, d, base, nbytes, off=0):
    if off:
        a("s_add_u32 s%d, s%d, %s" % (d, base, hx(off)))
        a("s_addc_u32 s%d, s%d, 0" % (d + 1, base + 1))
    else:
        a("s_mov_b32 s%d, s%d" % (d, base))
        a("s_mov_b32 s%d, s%d" % (d + 1, base + 1))
    a("s_mov_b32 s%d, %s" % (d + 2, hx(nbytes)))
    a("s_mov_b32 s%d, 0x20000" % (d + 3))


def srd_add(a, d, soff):
    a("s_add_u32 s%d, s%d, s%d" % (d, d, soff))
    a("s_addc_u32 s%d, s%d, 0" % (d + 1, d + 1))


def S4(d):
    return "s[%d:%d]" % (d, d + 3)


def half_sum(a, v, t):
    a("v_mov_b32 v%d, v%d" % (t, v))
    a("v_permlane32_swap_b32 v%d, v%d" % (t, v))
    a("v_add_f32 v%d, v%d, v%d" % (v, v, t))


def mf(a, d, A, B, C):
    a("%s %s, %s, %s, %s" % (MFMA, vr(d, 16), vr(A, 4), vr(B, 4), "0" if C is None else vr(C, 16)))


class VM:
    def __init__(self):
        self.q = []

    def add(self, tag):
        self.q.append(tag)

    def need(self, *tags):
        last = -1
        for i, t in enumerate(self.q):
            if t in tags:
                last = i
        return len(self.q) - 1 - last


def stamp(a, i):
    if PROF:
        a("s_memtime s[90:91]")
        a("s_waitcnt lgkmcnt(0)")
        a("v_writelane_b32 v255, s90, %d" % i)


def prof_end(a):
    if not PROF:
        return
    stamp(a, 20)
    a("s_memrealtime s[90:91]")
    a("s_waitcnt lgkmcnt(0)")
    a("v_writelane_b32 v255, s90, 31")
    a("s_lshl_b32 s6, s2, 3")
    a("s_add_u32 s6, s6, s%d" % sWave)
    a("s_lshl_b32 s6, s6, 7")
    a("s_add_u32 s6, s6, %d" % WS_PROF)
    a("s_add_u32 s8, s%d, s6" % PWS)
    a("s_addc_u32 s9, s%d, 0" % (PWS + 1))
    a("s_mov_b32 s10, 128")
    a("s_mov_b32 s11, 0x20000")
    a("v_lshlrev_b32 v2, 2, v0")
    a("buffer_store_dword v255, v2, s[8:11], 0 offen")


_uid = [0]


def uid(p):
    _uid[0] += 1
    return "%s_%d" % (p, _uid[0])


def signal(a, sOff, t0, t1):
    a("v_mov_b32 v%d, 0" % t0)
    a("v_mov_b32 v%d, 1" % t1)
    a("s_waitcnt vmcnt(0) lgkmcnt(0)")
    a("s_barrier")
    l = uid("sig")
    a("s_cmp_lg_u32 s%d, 0" % sWave)
    a("s_cbranch_scc1 %s" % l)
    a("s_mov_b64 exec, 1")
    a("buffer_atomic_add v%d, v%d, %s, s%d offen sc1" % (t1, t0, S4(sCT), sOff))
    a("s_mov_b64 exec, -1")
    a.label(l)


def poll(a, srd_, vOff, vWant, t0, nl):
    l, e = uid("poll"), uid("polle")
    a("s_mov_b64 exec, %d" % ((1 << nl) - 1))
    a("s_mov_b32 s%d, 0" % sSpin)
    a.label(l)
    a("buffer_load_dword v%d, v%d, %s, 0 offen sc1" % (t0, vOff, S4(srd_)))
    a("s_add_u32 s%d, s%d, 1" % (sSpin, sSpin))
    a("s_cmp_gt_u32 s%d, 0x100000" % sSpin)
    a("s_cbranch_scc1 %s" % e)
    a("s_waitcnt vmcnt(0)")
    a("v_cmp_ne_u32 vcc, v%d, v%d" % (t0, vWant))
    a("s_cbranch_vccnz %s" % l)
    a.label(e)
    a("s_mov_b64 exec, -1")


def inc_mod(a, s, m):
    a("s_add_u32 s%d, s%d, 1" % (s, s))
    a("s_cmp_eq_u32 s%d, %d" % (s, m))
    a("s_cselect_b32 s%d, 0, s%d" % (s, s))


def spread(steps, n):
    out = {g: [] for g in steps}
    per = -(-n // len(steps))
    k = 0
    for g in steps:
        for _ in range(per):
            if k < n:
                out[g].append(k)
                k += 1
    return out


def phase1(a):
    SLOT, NSLOT, XOFF = 28672, 5, 12288
    SCR = NSLOT * SLOT
    DEPTH = int(OPT.get("p1depth", 2))
    sG, sTg, sRot, sM, sSh, sTb, sDo = 32, 33, 34, 35, 64, 65, 66
    a("s_and_b32 s%d, s%d, 1" % (sT, sXcd))
    a("s_lshl_b32 s%d, s%d, 3" % (sT, sT))
    a("s_and_b32 s%d, s%d, 7" % (sT2, sI))
    a("s_add_u32 s%d, s%d, s%d" % (sG, sT, sT2))
    a("s_lshr_b32 s%d, s%d, 1" % (sT, sXcd))
    a("s_lshl_b32 s%d, s%d, 2" % (sT, sT))
    a("s_lshr_b32 s%d, s%d, 3" % (sT3, sI))
    a("s_add_u32 s%d, s%d, s%d" % (sTg, sT, sT3))
    a("s_lshl_b32 s%d, s%d, 1" % (sT3, sT3))
    a("s_add_u32 s%d, s%d, s%d" % (sRot, sT2, sT3))
    for _ in range(2):
        a("s_cmp_ge_u32 s%d, 7" % sRot)
        a("s_cselect_b32 s%d, 7, 0" % sT)
        a("s_sub_u32 s%d, s%d, s%d" % (sRot, sRot, sT))
    a("s_and_b32 s%d, s%d, 3" % (sTb, sWave))
    a("s_mul_i32 s%d, s%d, 168" % (sT4, sG))
    a("s_and_b32 s%d, s%d, 15" % (sSh, sT4))
    a("s_and_b32 s%d, s%d, 0xfffffff0" % (sT4, sT4))
    vDo = [2, 3, 4, 5]
    vXa = [6, 7, 8, 9]
    vWa = 10
    vT, vT2, vT3 = 11, 12, 13
    a("s_cmp_ge_u32 s%d, 4" % sWave)
    a("s_cbranch_scc1 p1_helper")

    def frag_addr():
        a("v_and_b32 v%d, 31, v0" % vT)
        a("v_lshrrev_b32 v%d, 5, v0" % vT2)
        a("v_bfe_u32 v%d, v0, 1, 3" % vT3)
        a("v_xor_b32 v%d, v%d, v%d" % (vT2, vT2, vT3))
        a("v_lshlrev_b32 v%d, 4, v%d" % (vT2, vT2))
        a("v_lshl_add_u32 v%d, v%d, 7, v%d" % (vT, vT, vT2))
        a("s_lshl_b32 s%d, s%d, 12" % (sT2, sTb))
        a("s_add_u32 s%d, s%d, %d" % (sT2, sT2, XOFF))
        a("v_add_u32 v%d, s%d, v%d" % (vXa[0], sT2, vT))
        for ks in range(1, 4):
            a("v_xor_b32 v%d, %d, v%d" % (vXa[ks], ks * 32, vXa[0]))
        a("v_lshrrev_b32 v%d, 5, v0" % vT)
        a("v_lshlrev_b32 v%d, 3, v%d" % (vT, vT))
        a("v_bfe_u32 v%d, v0, 2, 2" % vT2)
        a("v_add_u32 v%d, v%d, v%d" % (vT, vT, vT2))
        a("v_mul_u32_u24 v%d, 192, v%d" % (vT, vT))
        a("v_bfe_u32 v%d, v0, 4, 1" % vT2)
        a("v_lshlrev_b32 v%d, 5, v%d" % (vT2, vT2))
        a("v_and_b32 v%d, 3, v0" % vT3)
        a("v_lshlrev_b32 v%d, 3, v%d" % (vT3, vT3))
        a("v_add3_u32 v%d, v%d, v%d, v%d" % (vWa, vT, vT2, vT3))
        a("v_add_u32 v%d, s%d, v%d" % (vWa, sSh, vWa))

    def pipeline(per, issue, nrd, reads, compute):
        vm = VM()
        base = [0]

        def iss(st, i):
            issue(st, i)
            vm.add(st)

        def sync(st, lg):
            a("s_waitcnt vmcnt(%d) lgkmcnt(%d)" % (vm.need(st), lg))
            a("s_barrier")
            nb = (st % NSLOT) * SLOT
            if nb != base[0]:
                for r in vXa + [vWa]:
                    a("v_add_u32 v%d, %s, v%d" % (r, hx(nb - base[0]), r))
            base[0] = nb

        plan = {}
        for s_ in range(0, 7 - DEPTH):
            steps = [0, 1] if s_ == 0 else list(range(4 * s_ - 2, 4 * s_ + 2))
            for g, ps in spread(steps, per).items():
                plan[g] = [(s_ + DEPTH, p) for p in ps]

        def prologue():
            for st in range(DEPTH):
                for i in range(per):
                    iss(st, i)

        def loop():
            sync(0, 0)
            stamp(a, 2)
            reads(0, None)
            reads(1, None)
            for g in range(28):
                nxt = g + 2 < 28
                if nxt and (g + 2) % 4 == 0:
                    sync((g + 2) // 4, nrd)
                else:
                    a("s_waitcnt lgkmcnt(%d)" % (nrd if g < 27 else 0))
                compute(g, nxt)
                for st, i in plan.get(g, []):
                    iss(st, i)

        return prologue, loop

    fX = [68, 72, 76]
    fW = [80, 92, 104]
    a("s_mul_i32 s%d, s%d, 192" % (sT2, sWave))
    for i in range(3):
        a("v_add_u32 v%d, s%d, v0" % (vT, sT2))
        if i:
            a("v_add_u32 v%d, %d, v%d" % (vT, 64 * i, vT))
        a("v_mul_u32_u24 v%d, 43691, v%d" % (vT2, vT))
        a("v_lshrrev_b32 v%d, 19, v%d" % (vT2, vT2))
        a("v_mul_u32_u24 v%d, 12, v%d" % (vT3, vT2))
        a("v_sub_u32 v%d, v%d, v%d" % (vT, vT, vT3))
        a("v_mul_u32_u24 v%d, 2688, v%d" % (vDo[i], vT2))
        a("v_lshl_add_u32 v%d, v%d, 4, v%d" % (vDo[i], vT, vDo[i]))
        a("v_add_u32 v%d, s%d, v%d" % (vDo[i], sT4, vDo[i]))
        a("v_cmp_eq_u32 vcc, 11, v%d" % vT)
        a("v_mov_b32 v%d, 0x40000000" % vT3)
        a("v_cndmask_b32 v%d, v%d, v%d, vcc" % (vDo[i], vDo[i], vT3))
    a("s_mul_i32 s%d, s%d, 3072" % (sM, sWave))
    a("s_waitcnt lgkmcnt(0)")
    srd(a, SA, PWQKV, 448 * 2688)

    def issueW(st, i):
        if i == 0:
            a("s_mul_i32 s%d, s%d, %d" % (sDo, sRot, 64 * 2688))
        a("s_add_u32 m0, s%d, %d" % (sM, (st % NSLOT) * SLOT + i * 1024))
        a("buffer_load_dwordx4 v%d, %s, s%d offen lds" % (vDo[i], S4(SA), sDo))
        if i == 2:
            inc_mod(a, sRot, 7)

    acc = 20

    def rdX(g):
        a("ds_read_b128 %s, v%d" % (vr(fX[g % 3], 4), vXa[g % 4]))

    def rdW(g, p):
        for q in range(2):
            a("ds_read_b64_tr_b16 %s, v%d offset:%d" % (vr(fW[g % 3] + 4 * p + 2 * q, 2), vWa, (g % 4) * 3072 + q * 768 + p * 56))

    def readsM(g, _):
        rdX(g)
        for p in range(3):
            rdW(g, p)

    def computeM(g, nxt):
        for p in range(3):
            mf(a, acc + 16 * p, fW[g % 3] + 4 * p, fX[g % 3], acc + 16 * p)
            if nxt:
                if p == 0:
                    rdX(g + 2)
                rdW(g + 2, p)

    pro, loop = pipeline(3, issueW, 7, readsM, computeM)
    stamp(a, 1)
    pro()
    frag_addr()
    srd(a, sCT, PWS, 128 * 80, WS_CT)
    for r in range(acc, acc + 48):
        a("v_mov_b32 v%d, 0" % r)
    srd(a, SB, PWS, 48 * 131072 - 63 * 2048)
    a("s_lshl_b32 s%d, s%d, 2" % (sT, sTg))
    a("s_add_u32 s%d, s%d, s%d" % (sT, sT, sTb))
    a("s_lshl_b32 s%d, s%d, 11" % (sT, sT))
    srd_add(a, SB, sT)
    vSt, vSr, vTa, vTr = 14, 15, 16, 17
    a("v_and_b32 v%d, 31, v0" % vT)
    a("s_lshl_b32 s%d, s%d, 8" % (sT, sTb))
    a("s_add_u32 s%d, s%d, %d" % (sT, sT, SCR + 512))
    a("v_lshl_add_u32 v%d, v%d, 3, s%d" % (vSt, vT, sT))
    a("v_lshrrev_b32 v%d, 5, v0" % vT2)
    a("v_lshlrev_b32 v%d, 4, v%d" % (vSr, vT2))
    a("v_add_u32 v%d, %d, v%d" % (vSr, SCR, vSr))
    a("s_mul_i32 s%d, s%d, 4096" % (sT, sTb))
    a("s_add_u32 s%d, s%d, %d" % (sT, sT, SCR + 2048))
    a("v_lshlrev_b32 v%d, 6, v%d" % (vTa, vT))
    a("v_lshl_add_u32 v%d, v%d, 3, v%d" % (vTa, vT2, vTa))
    a("v_add_u32 v%d, s%d, v%d" % (vTa, sT, vTa))
    a("v_lshlrev_b32 v%d, 2, v%d" % (vT2, vT2))
    a("v_bfe_u32 v%d, v0, 2, 2" % vT3)
    a("v_add_u32 v%d, v%d, v%d" % (vT2, vT2, vT3))
    a("v_lshlrev_b32 v%d, 6, v%d" % (vTr, vT2))
    a("v_bfe_u32 v%d, v0, 4, 1" % vT3)
    a("v_lshl_add_u32 v%d, v%d, 5, v%d" % (vTr, vT3, vTr))
    a("v_and_b32 v%d, 3, v0" % vT3)
    a("v_lshl_add_u32 v%d, v%d, 3, v%d" % (vTr, vT3, vTr))
    a("v_add_u32 v%d, s%d, v%d" % (vTr, sT, vTr))
    loop()
    stamp(a, 3)
    a("s_barrier")
    a("ds_read_b64 v[2:3], v%d" % vSt)
    cs = 116
    for p in range(3):
        for i in range(4):
            a("ds_read_b128 %s, v%d offset:%d" % (vr(cs + 16 * p + 4 * i, 4), vSr, p * 128 + i * 32))
    a("s_mul_i32 s%d, s%d, 3" % (sT3, sG))
    for p in range(3):
        c = acc + 16 * p
        a("s_cmp_lt_u32 s%d, 16" % sT3)
        a("s_cselect_b32 s%d, %s, 1.0" % (sT, hx(f2u(DH ** -0.5 * math.log2(math.e)))))
        a("s_waitcnt lgkmcnt(%d)" % (8 if p == 0 else (4 if p == 1 else 0)))
        a("v_mul_f32 v4, s%d, v3" % sT)
        for r in range(0, 16, 2):
            a("v_pk_fma_f32 %s, %s, v[2:3], %s op_sel_hi:[1,0,1]" % (vr(c + r, 2), vr(cs + 16 * p + r, 2), vr(c + r, 2)))
        for r in range(0, 16, 2):
            a("v_pk_mul_f32 %s, %s, v[4:5] op_sel_hi:[1,0]" % (vr(c + r, 2), vr(c + r, 2)))
        pk = 68 + 8 * p
        for r in range(8):
            a("v_cvt_pk_bf16_f32 v%d, v%d, v%d" % (pk + r, c + 2 * r, c + 2 * r + 1))
        a("s_mov_b32 exec_lo, 0")
        a("v_mov_b32 v%d, 0x3f80" % (pk + 6))
        a("v_mov_b32 v%d, 0" % (pk + 7))
        a("s_mov_b32 exec_lo, -1")
        l = uid("p1nv")
        a("s_cmp_lt_u32 s%d, 32" % sT3)
        a("s_cbranch_scc1 %s" % l)
        for i in range(4):
            a("ds_write_b64 v%d, %s offset:%d" % (vTa, vr(pk + 2 * i, 2), 16 * i + (p & 1) * 2048))
        a("s_waitcnt lgkmcnt(0)")
        for j in range(2):
            for q in range(2):
                a("ds_read_b64_tr_b16 %s, v%d offset:%d" % (vr(pk + 4 * j + 2 * q, 2), vTr, (16 * j + 8 * q) * 64 + (p & 1) * 2048))
        a("s_waitcnt lgkmcnt(0)")
        a.label(l)
        a("s_lshl_b32 s%d, s%d, 17" % (sT, sT3))
        a("buffer_store_dwordx4 %s, v%d, %s, s%d offen sc1" % (vr(pk, 4), LO, S4(SB), sT))
        a("buffer_store_dwordx4 %s, v%d, %s, s%d offen offset:1024 sc1" % (vr(pk + 4, 4), LO, S4(SB), sT))
        if p < 2:
            a("s_add_u32 s%d, s%d, 1" % (sT3, sT3))
    a("s_branch p1_join")

    a.label("p1_helper")
    a("v_lshrrev_b32 v%d, 3, v0" % vT)
    a("s_lshl_b32 s%d, s%d, 5" % (sT, sTb))
    a("v_add_u32 v%d, s%d, v%d" % (vT, sT, vT))
    a("v_mul_u32_u24 v%d, 896, v%d" % (vT, vT))
    a("v_lshrrev_b32 v%d, 4, v0" % vT2)
    a("v_and_b32 v%d, 7, v0" % vT3)
    for i in range(4):
        if i < 2:
            a("v_xor_b32 v%d, v%d, v%d" % (vDo[i], vT2, vT3))
            if i == 1:
                a("v_xor_b32 v%d, 4, v%d" % (vDo[i], vDo[i]))
            a("v_lshlrev_b32 v%d, 4, v%d" % (vDo[i], vDo[i]))
            a("v_add_u32 v%d, v%d, v%d" % (vDo[i], vDo[i], vT))
            if i == 1:
                a("v_add_u32 v%d, %d, v%d" % (vDo[i], 8 * 896, vDo[i]))
        else:
            a("v_add_u32 v%d, %d, v%d" % (vDo[i], 16 * 896, vDo[i - 2]))
    a("s_lshl_b32 s%d, s%d, 12" % (sM, sTb))
    a("s_add_u32 s%d, s%d, %d" % (sM, sM, XOFF))
    a("s_mul_i32 s%d, s%d, %d" % (sT, sTg, 128 * 896))
    a("s_waitcnt lgkmcnt(0)")
    srd(a, SA, PX, 128 * 896)
    srd_add(a, SA, sT)

    def issueX(st, i):
        if i == 0:
            a("s_lshl_b32 s%d, s%d, 7" % (sDo, sRot))
        a("s_add_u32 m0, s%d, %d" % (sM, (st % NSLOT) * SLOT + i * 1024))
        a("buffer_load_dwordx4 v%d, %s, s%d offen lds" % (vDo[i], S4(SA), sDo))
        if i == 3:
            inc_mod(a, sRot, 7)

    hS, hQ, hC = [20, 21, 22, 23], [24, 25, 26, 27], [28, 29, 30, 31]

    def readsH(g, _):
        a("ds_read_b128 %s, v%d" % (vr(fX[g % 3], 4), vXa[g % 4]))
        for q in range(2):
            a("ds_read_b64_tr_b16 %s, v%d offset:%d" % (vr(fW[g % 3] + 2 * q, 2), vWa, (g % 4) * 3072 + q * 768))

    def computeH(g, nxt):
        b = g % 3
        for i in range(4):
            a("v_dot2c_f32_bf16 v%d, v%d, v%d" % (hQ[i], fX[b] + i, fX[b] + i))
        for i in range(4):
            a("v_dot2c_f32_bf16 v%d, s%d, v%d" % (hS[i], sOnes, fX[b] + i))
        if nxt:
            readsH(g + 2, None)
        for i in range(4):
            a("v_dot2c_f32_bf16 v%d, s%d, v%d" % (hC[i], sOnes, fW[b] + i))

    pro, loop = pipeline(4, issueX, 3, readsH, computeH)
    stamp(a, 1)
    srd(a, sCT, PWS, 128 * 80, WS_CT)
    srd(a, SB, PDBG, 256)
    a("s_lshl_b32 s%d, s2, 3" % sT)
    a("s_add_u32 s%d, s%d, s%d" % (sT, sT, sWave))
    a("s_cmp_lg_u32 s%d, 7" % sT)
    a("s_cbranch_scc1 p1_noinit")
    a("v_lshlrev_b32 v%d, 7, v0" % vT)
    a("v_mov_b32 v%d, 0" % vT2)
    a("buffer_store_dword v%d, v%d, %s, 0 offen sc1" % (vT2, vT, S4(sCT)))
    a("v_add_u32 v%d, 8192, v%d" % (vT, vT))
    a("buffer_store_dword v%d, v%d, %s, 0 offen sc1" % (vT2, vT, S4(sCT)))
    a("s_waitcnt vmcnt(0)")
    a("v_mov_b32 v%d, 1" % vT3)
    a("s_mov_b64 exec, 1")
    a("buffer_store_dword v%d, v%d, %s, 0 offen sc1" % (vT3, vT2, S4(SB)))
    a("s_mov_b64 exec, -1")
    a("s_waitcnt vmcnt(0)")
    a.label("p1_noinit")
    pro()
    if not OPT.get("notlb"):
        a("s_cmp_lg_u32 s%d, 6" % sWave)
        a("s_cbranch_scc1 p1_notlb")
        for k, p in enumerate((PWO, PW1, PW3, PW2, POUT)):
            a("s_load_dword s%d, s[%d:%d], 0" % (92 + (k & 3), p, p + 1))
        for k in range(10):
            a("s_mov_b32 s%d, %d" % (sT, k * (2 << 20) + (1 << 20)))
            a("s_load_dword s%d, s[%d:%d], s%d" % (92 + (k & 3), PWS, PWS + 1, sT))
        a.label("p1_notlb")
    frag_addr()
    a("s_min_u32 s%d, s%d, 2" % (sT, sTb))
    a("s_mul_i32 s%d, s%d, 56" % (sT, sT))
    a("v_add_u32 v%d, s%d, v%d" % (vWa, sT, vWa))
    for r in hS + hQ + hC:
        a("v_mov_b32 v%d, 0" % r)
    vS1, vS2 = 14, 15
    a("v_and_b32 v%d, 31, v0" % vT)
    a("s_lshl_b32 s%d, s%d, 8" % (sT, sTb))
    a("s_add_u32 s%d, s%d, %d" % (sT, sT, SCR + 512))
    a("v_lshl_add_u32 v%d, v%d, 3, s%d" % (vS1, vT, sT))
    a("s_lshl_b32 s%d, s%d, 7" % (sT, sTb))
    a("s_add_u32 s%d, s%d, %d" % (sT, sT, SCR))
    a("v_lshl_add_u32 v%d, v%d, 2, s%d" % (vS2, vT, sT))
    loop()
    stamp(a, 3)
    for h in (hS, hQ, hC):
        a("v_add_f32 v%d, v%d, v%d" % (h[0], h[0], h[1]))
        a("v_add_f32 v%d, v%d, v%d" % (h[2], h[2], h[3]))
    for h in (hS, hQ, hC):
        a("v_add_f32 v%d, v%d, v%d" % (h[0], h[0], h[2]))
    for h in (hS, hQ, hC):
        a("v_mov_b32 v%d, v%d" % (h[1], h[0]))
    for h in (hS, hQ, hC):
        a("v_permlane32_swap_b32 v%d, v%d" % (h[1], h[0]))
    for h in (hS, hQ, hC):
        a("v_add_f32 v%d, v%d, v%d" % (h[0], h[0], h[1]))
    a("ds_write_b32 v%d, v%d" % (vS2, hC[0]))
    a("v_mul_f32 v2, %s, v%d" % (hx(f2u(-1.0 / D)), hS[0]))
    a("v_mul_f32 v3, %s, v%d" % (hx(f2u(1.0 / D)), hQ[0]))
    a("v_fma_f32 v3, -v2, v2, v3")
    a("v_max_f32 v3, 0, v3")
    a("v_add_f32 v3, %s, v3" % hx(f2u(EPS)))
    a("v_rsq_f32 v3, v3")
    a("s_nop 0")
    a("ds_write_b64 v%d, v[2:3]" % vS1)
    a("s_waitcnt lgkmcnt(0)")
    a("s_barrier")
    a("s_cmp_lg_u32 s%d, 7" % sWave)
    a("s_cbranch_scc1 p1_join")
    a("v_mov_b32 v%d, 0" % vT)
    a("v_mov_b32 v%d, 1" % vT2)
    poll(a, SB, vT, vT2, vT3, 1)
    a.label("p1_join")
    stamp(a, 4)
    a("s_lshl_b32 s%d, s%d, 7" % (sT, sG))
    signal(a, sT, 2, 3)


WO_LDS = 98304


def p3_ids(a, sTp, sNt):
    a("s_lshl_b32 s%d, s%d, 2" % (sT, sXcd))
    a("s_and_b32 s%d, s%d, 3" % (sTp, sI))
    a("s_add_u32 s%d, s%d, s%d" % (sTp, sTp, sT))
    a("s_lshr_b32 s%d, s%d, 2" % (sNt, sI))


def wdma_off(a, vd, sCol, t1, t2):
    a("v_lshrrev_b32 v%d, 3, v0" % t1)
    a("v_mul_u32_u24 v%d, 896, v%d" % (vd, t1))
    a("v_bfe_u32 v%d, v0, 4, 1" % t1)
    a("v_lshlrev_b32 v%d, 2, v%d" % (t1, t1))
    a("v_and_b32 v%d, 7, v0" % t2)
    a("v_xor_b32 v%d, v%d, v%d" % (t1, t1, t2))
    a("v_lshl_add_u32 v%d, v%d, 4, v%d" % (vd, t1, vd))
    a("v_add_u32 v%d, s%d, v%d" % (vd, sCol, vd))


def wfrag_addr(a, v0t, v1t, sBase, t1, t2):
    a("v_lshrrev_b32 v%d, 5, v0" % t1)
    a("v_lshlrev_b32 v%d, 2, v%d" % (t1, t1))
    a("v_bfe_u32 v%d, v0, 2, 2" % t2)
    a("v_add_u32 v%d, v%d, v%d" % (t1, t1, t2))
    a("v_lshlrev_b32 v%d, 7, v%d" % (v0t, t1))
    a("v_bfe_u32 v%d, v0, 3, 1" % t1)
    a("v_lshl_add_u32 v%d, v%d, 6, v%d" % (v0t, t1, v0t))
    a("v_bfe_u32 v%d, v0, 4, 1" % t1)
    a("v_lshl_add_u32 v%d, v%d, 5, v%d" % (v0t, t1, v0t))
    a("v_and_b32 v%d, 3, v0" % t1)
    a("v_lshl_add_u32 v%d, v%d, 3, v%d" % (v0t, t1, v0t))
    a("v_add_u32 v%d, s%d, v%d" % (v0t, sBase, v0t))
    a("v_xor_b32 v%d, 64, v%d" % (v1t, v0t))


def phase2(a):
    SLOT = 32768
    sK, sV, sQ, sO, sWo, sPf = SA, SB, SC, SD, SE, SF
    sHead, sQg, sHalf, sQb, sSt, sSo, sM = 32, 33, 34, 35, 64, 65, 66
    sWoO, sWoM, sSoB, sTb2, sDo = 67, 68, 69, 70, 71
    a("s_lshl_b32 s%d, s%d, 1" % (sT, sXcd))
    a("s_and_b32 s%d, s%d, 1" % (sT2, sI))
    a("s_add_u32 s%d, s%d, s%d" % (sHead, sT, sT2))
    a("s_lshr_b32 s%d, s%d, 1" % (sQg, sI))
    a("s_cmp_lg_u32 s%d, 7" % sWave)
    a("s_cbranch_scc1 p2_wait")
    a("v_lshlrev_b32 v4, 4, v0")
    a("v_add_u32 v4, s%d, v4" % sHead)
    a("v_mul_u32_u24 v4, 171, v4")
    a("v_lshrrev_b32 v4, 9, v4")
    a("v_lshlrev_b32 v4, 7, v4")
    a("v_mov_b32 v5, 16")
    a("s_mov_b64 exec, 7")
    a("buffer_load_dword v6, v4, %s, 0 offen sc1" % S4(sCT))
    a("s_mov_b64 exec, -1")
    a.label("p2_wait")
    a("s_lshr_b32 s%d, s%d, 2" % (sHalf, sWave))
    a("s_and_b32 s%d, s%d, 3" % (sQb, sWave))
    a("s_lshl_b32 s%d, s%d, 17" % (sT, sHead))
    srd(a, sK, PWS, 131072, WS_KF)
    srd_add(a, sK, sT)
    srd(a, sV, PWS, 131072, WS_VF)
    srd_add(a, sV, sT)
    srd(a, sQ, PWS, 131072, WS_QF)
    srd_add(a, sQ, sT)
    a("s_lshl_b32 s%d, s%d, 2" % (sT, sQg))
    a("s_add_u32 s%d, s%d, s%d" % (sTb2, sT, sQb))
    srd(a, sO, PWS, 2048, WS_OF)
    a("s_lshl_b32 s%d, s%d, 15" % (sT, sTb2))
    srd_add(a, sO, sT)
    a("s_lshl_b32 s%d, s%d, 11" % (sT, sHead))
    srd_add(a, sO, sT)
    vAc, vAn, vWoO, vJ, vJ2 = 2, 3, 100, 101, 102
    a("s_lshl_b32 s%d, s%d, 16" % (sSoB, sHalf))
    a("s_lshl_b32 s%d, s%d, 11" % (sT, sQb))
    a("s_add_u32 s%d, s%d, s%d" % (sSoB, sSoB, sT))
    a("s_lshr_b32 s%d, s%d, 1" % (sSo, sQg))
    a("s_lshl_b32 s%d, s%d, 13" % (sSo, sSo))
    a("s_lshl_b32 s%d, s%d, 14" % (sT, sHalf))
    a("s_lshl_b32 s%d, s%d, 12" % (sM, sQb))
    a("s_add_u32 s%d, s%d, s%d" % (sM, sM, sT))
    a("v_add_u32 v%d, s%d, v%d" % (vAc, sT, LO))
    a("v_add_u32 v%d, %d, v%d" % (vAn, SLOT, vAc))
    p3_ids(a, sT2, sT4)
    a("s_lshl_b32 s%d, s%d, 7" % (sT4, sT4))
    wdma_off(a, vWoO, sT4, 7, 8)
    srd(a, sWo, PWO, 448 * 896)
    a("s_cmp_lt_u32 s%d, 28" % sI)
    a("s_cselect_b32 s%d, s%d, 0" % (sWo + 2, sWo + 2))
    a("s_mul_i32 s%d, s%d, %d" % (sWoO, sWave, 8 * 896))
    a("s_lshl_b32 s%d, s%d, 10" % (sWoM, sWave))
    a("s_add_u32 s%d, s%d, %d" % (sWoM, sWoM, WO_LDS))
    pf_setup(a)
    vQ = 4
    fK = [12, 20]
    fV = [28, 36]
    Sb = [44, 60]
    P = 76
    O = 84
    for r in range(16):
        a("v_mov_b32 v%d, 0" % (O + r))
    a("s_mov_b32 s%d, 0" % sSt)
    a("s_lshl_b32 s%d, s%d, 11" % (sT2, sTb2))
    a("s_cmp_lg_u32 s%d, 7" % sWave)
    a("s_cbranch_scc1 p2_wait2")
    poll(a, sCT, 4, 5, 6, 3)
    a.label("p2_wait2")
    a("s_barrier")
    stamp(a, 5)

    def dma(i):
        if i == 0:
            a("s_add_u32 s%d, s%d, s%d" % (sDo, sSo, sSoB))
        a("s_add_u32 m0, s%d, %d" % (sM, 1024 * (i & 2)))
        a("buffer_load_dwordx4 v%d, %s, s%d offen%s sc1 lds" % (LO, S4(sK if i < 2 else sV), sDo, " offset:1024" if i & 1 else ""))
        if i == 3:
            a("s_add_u32 s%d, s%d, 8192" % (sSo, sSo))
            a("s_and_b32 s%d, s%d, 0xffff" % (sSo, sSo))
            a("s_add_u32 s%d, s%d, %d" % (sM, sM, SLOT))
            a("s_cmp_ge_u32 s%d, %d" % (sM, 3 * SLOT))
            a("s_cselect_b32 s%d, %d, 0" % (sT, 3 * SLOT))
            a("s_sub_u32 s%d, s%d, s%d" % (sM, sM, sT))

    def side_wo():
        a("s_mov_b32 m0, s%d" % sWoM)
        a("s_add_u32 s%d, s%d, 8192" % (sWoM, sWoM))
        a("buffer_load_dwordx4 v%d, %s, s%d offen lds" % (vWoO, S4(sWo), sWoO))
        a("s_add_u32 s%d, s%d, %d" % (sWoO, sWoO, 64 * 896))
        a("s_min_u32 s%d, s%d, %d" % (sWoM, sWoM, WO_LDS + 57 * 1024))

    for i in range(2):
        dma(i)
    a("buffer_load_dwordx4 %s, v%d, %s, s%d offen sc1" % (vr(vQ, 4), LO, S4(sQ), sT2))
    a("buffer_load_dwordx4 %s, v%d, %s, s%d offen offset:1024 sc1" % (vr(vQ + 4, 4), LO, S4(sQ), sT2))
    for i in range(2, 4):
        dma(i)
    a("s_waitcnt vmcnt(0)")
    a("s_barrier")
    stamp(a, 6)

    def rdK(buf, areg, t):
        a("ds_read_b128 %s, v%d offset:%d" % (vr(fK[buf], 4), areg, t * 4096))
        a("ds_read_b128 %s, v%d offset:%d" % (vr(fK[buf] + 4, 4), areg, t * 4096 + 1024))

    def rdV(buf, areg, t):
        a("ds_read_b128 %s, v%d offset:%d" % (vr(fV[buf], 4), areg, t * 4096 + 2048))
        a("ds_read_b128 %s, v%d offset:%d" % (vr(fV[buf] + 4, 4), areg, t * 4096 + 3072))

    a("ds_read_b128 %s, v%d" % (vr(fV[1], 4), LO))
    a("ds_read_b128 %s, v%d offset:1024" % (vr(fV[1] + 4, 4), LO))
    rdK(0, vAc, 0)
    rdK(1, vAc, 1)
    rdV(0, vAc, 0)
    a("s_mov_b32 exec_lo, 0")
    a("v_mov_b32 v%d, 0" % (vQ + 6))
    a("s_mov_b32 exec_lo, -1")
    a("s_waitcnt lgkmcnt(6)")
    mf(a, Sb[1], fV[1], vQ, None)
    mf(a, Sb[1], fV[1] + 4, vQ + 4, Sb[1])
    for i in range(4):
        dma(i)
    a("v_max3_f32 v%d, v%d, v%d, v%d" % (P, Sb[1], Sb[1] + 1, Sb[1] + 2))
    a("v_max3_f32 v%d, v%d, v%d, v%d" % (P + 1, Sb[1] + 3, Sb[1] + 4, Sb[1] + 5))
    for r in range(6, 14, 4):
        a("v_max3_f32 v%d, v%d, v%d, v%d" % (P, P, Sb[1] + r, Sb[1] + r + 1))
        a("v_max3_f32 v%d, v%d, v%d, v%d" % (P + 1, P + 1, Sb[1] + r + 2, Sb[1] + r + 3))
    a("v_max3_f32 v%d, v%d, v%d, v%d" % (P, P, Sb[1] + 14, Sb[1] + 15))
    a("v_max_f32 v%d, v%d, v%d" % (P, P, P + 1))
    a("v_mov_b32 v%d, v%d" % (P + 1, P))
    a("v_permlane32_swap_b32 v%d, v%d" % (P + 1, P))
    a("v_max_f32 v%d, v%d, v%d" % (P, P, P + 1))
    a("s_mov_b32 exec_lo, 0")
    a("v_cvt_pk_bf16_f32 v%d, -v%d, 0" % (vQ + 6, P))
    a("s_mov_b32 exec_lo, -1")
    a("s_waitcnt lgkmcnt(4)")
    mf(a, Sb[0], fK[0], vQ, None)
    mf(a, Sb[0], fK[0] + 4, vQ + 4, Sb[0])
    a("s_nop 7")
    stamp(a, 17)
    nod, nos, nob = OPT.get("nodma"), OPT.get("noside"), OPT.get("nobar")
    a.label("attn_loop")
    for t in range(4):
        c, n = t & 1, (t + 1) & 1
        if t == 2:
            if not nob:
                a("s_waitcnt vmcnt(%d)" % (0 if nos else 2))
                a("s_barrier")
            a("s_cmp_lt_u32 s%d, 6" % sSt)
            a("s_cselect_b32 s%d, 0x20000, 0" % (sK + 2))
            a("s_cselect_b32 s%d, 0x20000, 0" % (sV + 2))
        rdK(c, vAc if t + 2 < 4 else vAn, (t + 2) & 3)
        rdV(n, vAc if t + 1 < 4 else vAn, (t + 1) & 3)
        a("s_waitcnt lgkmcnt(4)")
        Sc, Sn = Sb[c], Sb[n]
        mf(a, Sn, fK[n], vQ, None)
        for r in range(0, 4):
            a("v_exp_f32 v%d, v%d" % (Sc + r, Sc + r))
        if t == 2 and not nod:
            dma(0)
        if t == 3 and not nod:
            dma(3)
        if t == 0 and not nos:
            side_wo()
        if t == 1 and not nos:
            pf_issue(a, vJ2, sPf, sSt)
        mf(a, Sn, fK[n] + 4, vQ + 4, Sn)
        for r in range(4, 8):
            a("v_exp_f32 v%d, v%d" % (Sc + r, Sc + r))
        if t == 2 and not nod:
            dma(1)
        a("v_exp_f32 v%d, v%d" % (Sc + 8, Sc + 8))
        for r in range(0, 4):
            a("v_cvt_pk_bf16_f32 v%d, v%d, v%d" % (P + r, Sc + 2 * r, Sc + 2 * r + 1))
        for r in range(9, 11):
            a("v_exp_f32 v%d, v%d" % (Sc + r, Sc + r))
        mf(a, O, fV[c], P, O)
        for r in range(11, 16):
            a("v_exp_f32 v%d, v%d" % (Sc + r, Sc + r))
        if t == 2 and not nod:
            dma(2)
        if t == 3:
            a("v_mov_b32 v%d, v%d" % (vAc, vAn))
            a("v_add_u32 v%d, %d, v%d" % (vAn, SLOT, vAn))
            a("v_cmp_le_u32 vcc, %d, v%d" % (3 * SLOT, vAn))
            a("v_subrev_u32 v%d, %d, v%d" % (vJ, 3 * SLOT, vAn))
            a("s_add_u32 s%d, s%d, 1" % (sSt, sSt))
        for r in range(4, 8):
            a("v_cvt_pk_bf16_f32 v%d, v%d, v%d" % (P + r, Sc + 2 * r, Sc + 2 * r + 1))
        if t == 3:
            a("v_cndmask_b32 v%d, v%d, v%d, vcc" % (vAn, vAn, vJ))
            a("s_cmp_lt_u32 s%d, 8" % sSt)
        mf(a, O, fV[c] + 4, P + 4, O)
    a("s_cbranch_scc1 attn_loop")
    stamp(a, 7)
    vSa = 2
    a("s_lshl_b32 s%d, s%d, 12" % (sT, sQb))
    a("v_add_u32 v%d, s%d, v%d" % (vSa, sT, LO))
    a("s_waitcnt vmcnt(0) lgkmcnt(0)")
    a("s_barrier")
    a("s_cmp_eq_u32 s%d, 0" % sHalf)
    a("s_cbranch_scc1 attn_lead")
    a("s_nop 4")
    for i in range(4):
        a("ds_write_b128 v%d, %s offset:%d" % (vSa, vr(O + 4 * i, 4), i * 1024))
    a("s_waitcnt lgkmcnt(0)")
    a("s_barrier")
    a("s_branch attn_join")
    a.label("attn_lead")
    a("s_barrier")
    T = 44
    for i in range(4):
        a("ds_read_b128 %s, v%d offset:%d" % (vr(T + 4 * i, 4), vSa, i * 1024))
    a("s_waitcnt lgkmcnt(0)")
    for r in range(0, 16, 2):
        a("v_pk_add_f32 %s, %s, %s" % (vr(O + r, 2), vr(O + r, 2), vr(T + r, 2)))
    a.label("attn_norm")
    vL, vT = 60, 62
    a("v_mov_b32 v%d, v%d" % (vL, O + 12))
    a("v_mov_b32 v%d, v%d" % (vT, O + 12))
    a("s_mov_b32 s%d, %s" % (sT, hx(f2u(2.0 ** 60))))
    a("s_mov_b32 s%d, %s" % (sT2, hx(f2u(2.0 ** -60))))
    a("v_permlane32_swap_b32 v%d, v%d" % (vT, vL))
    a("v_rcp_f32 v%d, v%d" % (vT, vL))
    a("s_mov_b32 exec_lo, 0")
    for r in range(12, 16):
        a("v_mov_b32 v%d, 0" % (O + r))
    a("s_mov_b32 exec_lo, -1")
    a("v_cmp_nle_f32 s[72:73], v%d, s%d" % (vL, sT))
    a("v_cmp_nge_f32 s[74:75], v%d, s%d" % (vL, sT2))
    for r in range(0, 16, 2):
        a("v_pk_mul_f32 %s, %s, %s op_sel_hi:[1,0]" % (vr(O + r, 2), vr(O + r, 2), vr(vT, 2)))
    a("v_pk_mul_f32 v[64:65], %s, 0" % vr(O, 2))
    for r in range(2, 16, 2):
        a("v_pk_fma_f32 v[64:65], %s, 0, v[64:65]" % vr(O + r, 2))
    for r in range(8):
        a("v_cvt_pk_bf16_f32 v%d, v%d, v%d" % (P + r, O + 2 * r, O + 2 * r + 1))
    a("v_cmp_u_f32 vcc, v64, v65")
    a("s_or_b64 s[72:73], s[72:73], s[74:75]")
    a("s_or_b64 s[72:73], s[72:73], vcc")
    a("s_cmp_eq_u32 s%d, 8" % sSt)
    a("s_cselect_b64 s[72:73], s[72:73], 0")
    a("s_cmp_lg_u64 s[72:73], 0")
    a("s_cbranch_scc1 attn_slow")
    a("buffer_store_dwordx4 %s, v%d, %s, 0 offen sc1" % (vr(P, 4), LO, S4(sO)))
    a("buffer_store_dwordx4 %s, v%d, %s, 0 offen offset:1024 sc1" % (vr(P + 4, 4), LO, S4(sO)))
    a.label("attn_join")
    stamp(a, 8)
    a("s_lshl_b32 s%d, s%d, 7" % (sT, sQg))
    a("s_add_u32 s%d, s%d, %d" % (sT, sT, 16 * 128))
    signal(a, sT, 2, 3)

    def slow():
        a.label("attn_slow")
        a("s_mov_b32 s%d, 9" % sSt)
        a("s_mov_b32 s%d, 0x20000" % (sK + 2))
        a("s_mov_b32 s%d, 0x20000" % (sV + 2))
        a("s_mov_b32 exec_lo, 0")
        a("v_mov_b32 v%d, 0" % (vQ + 6))
        a("s_mov_b32 exec_lo, -1")
        vMx = 60
        a("v_mov_b32 v%d, 0xff800000" % vMx)
        a("s_mov_b32 s%d, 0" % sSo)
        a.label("attn_slow1")
        a("buffer_load_dwordx4 %s, v%d, %s, s%d offen sc1" % (vr(fK[0], 4), LO, S4(sK), sSo))
        a("buffer_load_dwordx4 %s, v%d, %s, s%d offen offset:1024 sc1" % (vr(fK[0] + 4, 4), LO, S4(sK), sSo))
        a("s_waitcnt vmcnt(0)")
        mf(a, Sb[0], fK[0], vQ, None)
        mf(a, Sb[0], fK[0] + 4, vQ + 4, Sb[0])
        for r in range(0, 16, 2):
            a("v_max3_f32 v%d, v%d, v%d, v%d" % (vMx, vMx, Sb[0] + r, Sb[0] + r + 1))
        a("s_add_u32 s%d, s%d, 2048" % (sSo, sSo))
        a("s_cmp_lt_u32 s%d, 0x20000" % sSo)
        a("s_cbranch_scc1 attn_slow1")
        a("v_mov_b32 v61, v%d" % vMx)
        a("v_permlane32_swap_b32 v61, v%d" % vMx)
        a("v_max_f32 v%d, v%d, v61" % (vMx, vMx))
        for r in range(16):
            a("v_mov_b32 v%d, 0" % (O + r))
        a("s_mov_b32 s%d, 0" % sSo)
        a.label("attn_slow2")
        a("buffer_load_dwordx4 %s, v%d, %s, s%d offen sc1" % (vr(fK[0], 4), LO, S4(sK), sSo))
        a("buffer_load_dwordx4 %s, v%d, %s, s%d offen offset:1024 sc1" % (vr(fK[0] + 4, 4), LO, S4(sK), sSo))
        a("buffer_load_dwordx4 %s, v%d, %s, s%d offen sc1" % (vr(fV[0], 4), LO, S4(sV), sSo))
        a("buffer_load_dwordx4 %s, v%d, %s, s%d offen offset:1024 sc1" % (vr(fV[0] + 4, 4), LO, S4(sV), sSo))
        a("s_waitcnt vmcnt(0)")
        mf(a, Sb[0], fK[0], vQ, None)
        mf(a, Sb[0], fK[0] + 4, vQ + 4, Sb[0])
        for r in range(16):
            a("v_sub_f32 v%d, v%d, v%d" % (Sb[0] + r, Sb[0] + r, vMx))
        for r in range(16):
            a("v_exp_f32 v%d, v%d" % (Sb[0] + r, Sb[0] + r))
        for r in range(8):
            a("v_cvt_pk_bf16_f32 v%d, v%d, v%d" % (P + r, Sb[0] + 2 * r, Sb[0] + 2 * r + 1))
        mf(a, O, fV[0], P, O)
        mf(a, O, fV[0] + 4, P + 4, O)
        a("s_add_u32 s%d, s%d, 2048" % (sSo, sSo))
        a("s_cmp_lt_u32 s%d, 0x20000" % sSo)
        a("s_cbranch_scc1 attn_slow2")
        a("s_nop 15")
        a("s_branch attn_norm")

    return slow


sPfA, sPfB, sPfW = 80, 84, 88


def pf_setup(a):
    for k, d in enumerate((sPfA, sPfB)):
        a("s_mul_i32 s%d, s%d, 10" % (sT, sI))
        a("s_add_u32 s%d, s%d, s%d" % (sT, sT, sWave))
        if k:
            a("s_add_u32 s%d, s%d, 8" % (sT, sT))
        a("s_cmp_lt_u32 s%d, 294" % sT)
        a("s_cselect_b32 s%d, 64, 0" % (d + 2))
        if k:
            a("s_cmp_lt_u32 s%d, 2" % sWave)
            a("s_cselect_b32 s%d, s%d, 0" % (d + 2, d + 2))
        if OPT.get("nopf"):
            a("s_mov_b32 s%d, 0" % (d + 2))
        a("s_cmp_ge_u32 s%d, 245" % sT)
        a("s_cselect_b32 s%d, s%d, s%d" % (d, PW3, PW1))
        a("s_cselect_b32 s%d, s%d, s%d" % (d + 1, PW3 + 1, PW1 + 1))
        a("s_mov_b32 s%d, 196" % sT2)
        a("s_cselect_b32 s%d, 245, s%d" % (sT2, sT2))
        a("s_and_b32 s%d, s%d, 3" % (sT4, sXcd))
        a("s_mul_i32 s%d, s%d, 896" % (sT4, sT4))
        a("s_cmp_lt_u32 s%d, 196" % sT)
        a("s_cselect_b32 s%d, s%d, s%d" % (d, PW2, d))
        a("s_cselect_b32 s%d, s%d, s%d" % (d + 1, PW2 + 1, d + 1))
        a("s_cselect_b32 s%d, 0, s%d" % (sT2, sT2))
        a("s_mov_b32 s%d, 3584" % sT3)
        a("s_cselect_b32 s%d, 896, s%d" % (sT3, sT3))
        a("s_cselect_b32 s%d, 0, s%d" % (sT4, sT4))
        a("s_sub_u32 s%d, s%d, s%d" % (sT2, sT, sT2))
        a("s_min_u32 s%d, s%d, 195" % (sT2, sT2))
        a("s_mul_i32 s%d, s%d, 9363" % (sT, sT2))
        a("s_lshr_b32 s%d, s%d, 16" % (sT, sT))
        a("s_mul_i32 s%d, s%d, 7" % (d + 3, sT))
        a("s_sub_u32 s%d, s%d, s%d" % (sT2, sT2, d + 3))
        a("s_lshl_b32 s%d, s%d, 7" % (sT2, sT2))
        a("s_add_u32 s%d, s%d, s%d" % (sT4, sT4, sT2))
        a("s_mul_i32 s%d, s%d, s%d" % (sT, sT, sT3))
        a("s_lshl_b32 s%d, s%d, 6" % (sT, sT))
        a("s_add_u32 s%d, s%d, s%d" % (sT4, sT4, sT))
        a("s_add_u32 s%d, s%d, s%d" % (d, d, sT4))
        a("s_addc_u32 s%d, s%d, 0" % (d + 1, d + 1))
        a("s_lshl_b32 s%d, s%d, 16" % (sT3, sT3))
        a("s_or_b32 s%d, s%d, s%d" % (d + 1, d + 1, sT3))
    a("s_add_u32 s%d, s%d, 4" % (sPfW, sWave))


def pf_issue(a, vJ, sPf, sSt):
    a("s_cmp_eq_u32 s%d, s%d" % (sSt, sWave))
    a("s_cselect_b32 s%d, s%d, s%d" % (sPf, sPfA, sPfB))
    a("s_cselect_b32 s%d, s%d, s%d" % (sPf + 1, sPfA + 1, sPfB + 1))
    a("s_cselect_b32 s%d, s%d, 0" % (sPf + 2, sPfA + 2))
    a("s_cmp_eq_u32 s%d, s%d" % (sSt, sPfW))
    a("s_cselect_b32 s%d, s%d, s%d" % (sPf + 2, sPfB + 2, sPf + 2))
    a("s_mov_b32 s%d, 0x20000" % (sPf + 3))
    a("buffer_load_dword v%d, v0, %s, 0 idxen" % (vJ, S4(sPf)))


def phase3(a):
    RED = 0
    sA, sX, sO = SA, SB, SC
    sTp, sNt, sKq, sB, sTb, sCt, sJ = 32, 33, 34, 35, 64, 65, 66
    p4_prefetch_setup(a)
    a("s_cmp_ge_u32 s%d, 28" % sI)
    a("s_cbranch_scc1 colsum")
    for i in range(4):
        p4_issueW(a, 0, i)
    p3_ids(a, sTp, sNt)
    a("s_and_b32 s%d, s%d, 3" % (sKq, sWave))
    a("s_lshr_b32 s%d, s%d, 2" % (sB, sWave))
    a("s_lshl_b32 s%d, s%d, 1" % (sTb, sTp))
    a("s_add_u32 s%d, s%d, s%d" % (sTb, sTb, sB))
    a("s_and_b32 s%d, s%d, 1" % (sT, sKq))
    a("s_lshl_b32 s%d, s%d, 1" % (sCt, sNt))
    a("s_add_u32 s%d, s%d, s%d" % (sCt, sCt, sT))
    a("s_lshr_b32 s%d, s%d, 1" % (sJ, sKq))
    vWa0, vWa1, vXo, vA, t1, t2 = 2, 3, 4, 5, 6, 7
    a("v_and_b32 v%d, 31, v0" % t1)
    a("v_mul_u32_u24 v%d, 896, v%d" % (vXo, t1))
    a("v_lshrrev_b32 v%d, 5, v0" % t1)
    a("v_lshl_add_u32 v%d, v%d, 3, v%d" % (vXo, t1, vXo))
    srd(a, sX, PX, S * 896)
    a("s_mul_i32 s%d, s%d, %d" % (sT, sTb, 32 * 896))
    a("s_lshl_b32 s%d, s%d, 6" % (sT2, sCt))
    a("s_add_u32 s%d, s%d, s%d" % (sT, sT, sT2))
    a("s_lshl_b32 s%d, s%d, 5" % (sT2, sJ))
    a("s_add_u32 s%d, s%d, s%d" % (sT, sT, sT2))
    vX = 8
    for i in range(2):
        a("buffer_load_dwordx2 %s, v%d, %s, s%d offen offset:%d" % (vr(vX + 2 * i, 2), vXo, S4(sX), sT, i * 16))
    a("s_mul_i32 s%d, s%d, %d" % (sT, sKq, 112 * 128))
    a("s_add_u32 s%d, s%d, %d" % (sT, sT, WO_LDS))
    wfrag_addr(a, vWa0, vWa1, sT, t1, t2)
    srd(a, sA, PWS, 8192, WS_OF)
    a("s_lshl_b32 s%d, s%d, 15" % (sT, sTb))
    srd_add(a, sA, sT)
    a("s_lshl_b32 s%d, s%d, 13" % (sT, sKq))
    srd_add(a, sA, sT)
    srd(a, sO, PWS, 1024, WS_HF)
    a("s_mul_i32 s%d, s%d, 28672" % (sT, sTb))
    srd_add(a, sO, sT)
    a("s_lshl_b32 s%d, s%d, 1" % (sT, sCt))
    a("s_add_u32 s%d, s%d, s%d" % (sT3, sT, sJ))
    a("s_lshl_b32 s%d, s%d, 10" % (sT, sT3))
    srd_add(a, sO, sT)
    acc = 16
    fX = 48
    fW = 100
    for r in range(32):
        a("v_mov_b32 v%d, 0" % (acc + r))
    for s in range(8):
        hh, j = divmod(s, 2)
        for t in range(2):
            for q in range(2):
                a("ds_read_b64_tr_b16 %s, v%d offset:%d" % (vr(fW + 8 * s + 4 * t + 2 * q, 2), (vWa0, vWa1)[t], (28 * hh + 16 * j + 8 * q) * 128))
        if s % 3 == 2:
            a("s_waitcnt lgkmcnt(0)")
    red_addr(a, RED, sB, vA)
    a("s_cmp_lg_u32 s%d, 7" % sWave)
    a("s_cbranch_scc1 p3_wait")
    a("s_lshr_b32 s%d, s%d, 1" % (sT, sTp))
    a("s_lshl_b32 s%d, s%d, 7" % (sT, sT))
    a("s_add_u32 s%d, s%d, %d" % (sT, sT, 16 * 128))
    a("v_mov_b32 v%d, s%d" % (t1, sT))
    a("v_mov_b32 v%d, 16" % t2)
    poll(a, sCT, t1, t2, 12, 1)
    a.label("p3_wait")
    a("s_mov_b32 s%d, 4096" % sT)
    a("s_waitcnt lgkmcnt(0)")
    a("s_barrier")
    stamp(a, 9)
    for s in range(8):
        a("buffer_load_dwordx4 %s, v%d, %s, %s offen offset:%d sc1" % (vr(fX + 4 * s, 4), LO, S4(sA), "0" if s < 4 else "s%d" % sT, (s & 3) * 1024))
    for s in range(8):
        a("s_waitcnt vmcnt(%d)" % (7 - s))
        for t in range(2):
            mf(a, acc + 16 * t, fW + 8 * s + 4 * t, fX + 4 * s, acc + 16 * t)
    stamp(a, 18)
    reduce8(a, acc, sKq, vA, 48, "p3")
    for i in range(4):
        a("v_lshlrev_b32 v%d, 16, v%d" % (t1, vX + i))
        a("v_and_b32 v%d, 0xffff0000, v%d" % (t2, vX + i))
        a("v_add_f32 v%d, v%d, v%d" % (t1, t1, acc + 2 * i))
        a("v_add_f32 v%d, v%d, v%d" % (t2, t2, acc + 2 * i + 1))
        a("v_cvt_pk_bf16_f32 v%d, v%d, v%d" % (12 + i, t1, t2))
    a("buffer_store_dwordx4 v[12:15], v%d, %s, 0 offen sc1" % (LO, S4(sO)))
    a("s_lshr_b32 s%d, s%d, 1" % (sT, sTp))
    a("s_lshl_b32 s%d, s%d, 7" % (sT, sT))
    a("s_add_u32 s%d, s%d, %d" % (sT, sT, 32 * 128))
    stamp(a, 10)
    signal(a, sT, 2, 3)
    for st in (1, 2):
        for i in range(4):
            p4_issueW(a, st, i)
    a("s_branch p3_done")
    a.label("colsum")
    sU = 32
    a("s_sub_u32 s%d, s%d, 28" % (sT, sI))
    a("s_lshl_b32 s%d, s%d, 3" % (sT, sT))
    a("s_add_u32 s%d, s%d, s%d" % (sU, sT, sXcd))
    a("s_cmp_ge_u32 s%d, 28" % sU)
    a("s_cbranch_scc1 colsum_end")
    a("s_cmp_ge_u32 s%d, 14" % sU)
    a("s_cselect_b32 s%d, s%d, s%d" % (SA, PW3, PW1))
    a("s_cselect_b32 s%d, s%d, s%d" % (SA + 1, PW3 + 1, PW1 + 1))
    a("s_cselect_b32 s%d, 14, 0" % sT2)
    a("s_mov_b32 s%d, %d" % (SA + 2, 448 * 3584))
    a("s_mov_b32 s%d, 0x20000" % (SA + 3))
    a("s_sub_u32 s%d, s%d, s%d" % (sT2, sU, sT2))
    a("s_lshl_b32 s%d, s%d, 8" % (sT2, sT2))
    a("s_mul_i32 s%d, s%d, %d" % (sT, sWave, 4 * 3584))
    a("s_add_u32 s%d, s%d, s%d" % (sT2, sT2, sT))
    a("v_lshrrev_b32 v2, 4, v0")
    a("v_mul_u32_u24 v2, 3584, v2")
    a("v_and_b32 v3, 15, v0")
    a("v_lshl_add_u32 v2, v3, 4, v2")
    for i in range(14):
        a("buffer_load_dwordx4 %s, v2, %s, s%d offen" % (vr(16 + 4 * i, 4), S4(SA), sT2))
        if i < 13:
            a("s_add_u32 s%d, s%d, %d" % (sT2, sT2, 32 * 3584))
    srd(a, SB, PWS, 2 * 1792 * 4, WS_CS)
    for r in range(8):
        a("v_mov_b32 v%d, 0" % (8 + r))
    for i in range(14):
        a("s_waitcnt vmcnt(%d)" % (13 - i))
        for d in range(4):
            a("v_lshlrev_b32 v4, 16, v%d" % (16 + 4 * i + d))
            a("v_and_b32 v5, 0xffff0000, v%d" % (16 + 4 * i + d))
            a("v_add_f32 v%d, v%d, v4" % (8 + 2 * d, 8 + 2 * d))
            a("v_add_f32 v%d, v%d, v5" % (9 + 2 * d, 9 + 2 * d))
    a("s_lshl_b32 s%d, s%d, 11" % (sT, sWave))
    a("v_lshl_add_u32 v4, v0, 5, s%d" % sT)
    a("ds_write_b128 v4, v[8:11]")
    a("ds_write_b128 v4, v[12:15] offset:16")
    a("s_waitcnt lgkmcnt(0)")
    a("s_barrier")
    a("s_and_b32 s%d, s%d, 1" % (sT, sWave))
    a("s_lshl_b32 s%d, s%d, 8" % (sT, sT))
    a("v_lshl_add_u32 v4, v0, 2, s%d" % sT)
    for i in range(32):
        a("ds_read_b32 v%d, v4 offset:%d" % (16 + i, i * 512))
        if i == 14 or i == 29:
            a("s_waitcnt lgkmcnt(0)")
    a("s_waitcnt lgkmcnt(0)")
    for i in range(1, 32):
        a("v_add_f32 v16, v16, v%d" % (16 + i))
    a("s_lshl_b32 s%d, s%d, 9" % (sT2, sU))
    a("s_cmp_ge_u32 s%d, 2" % sWave)
    a("s_cbranch_scc1 colsum_ns")
    a("buffer_store_dword v16, v4, %s, s%d offen sc1" % (S4(SB), sT2))
    a.label("colsum_ns")
    a("s_mov_b32 s%d, %d" % (sT, 64 * 128))
    signal(a, sT, 2, 3)
    a.label("colsum_end")
    for st in range(3):
        for i in range(4):
            p4_issueW(a, st, i)
    a.label("p3_done")


def red_addr(a, RED, sB, vA):
    a("s_mul_i32 s%d, s%d, 24576" % (sT, sB))
    if RED:
        a("s_add_u32 s%d, s%d, %d" % (sT, sT, RED))
    a("v_add_u32 v%d, s%d, v%d" % (vA, sT, LO))


def reduce8(a, acc, sKq, vA, T, lab):
    a("s_mul_i32 s%d, s%d, 6144" % (sT, sKq))
    a("s_nop 7")
    for w in range(4):
        if w:
            a.label("%s_red%d" % (lab, w))
        if w < 3:
            a("s_cmp_lg_u32 s%d, %d" % (sKq, w))
            a("s_cbranch_scc1 %s_red%d" % (lab, w + 1))
        for k in range(1, 4):
            dst = w ^ k
            pc = 2 * (dst & 1) + (dst >> 1)
            for i in range(2):
                a("ds_write_b128 v%d, %s offset:%d" % (vA, vr(acc + 8 * pc + 4 * i, 4), dst * 6144 + (k - 1) * 2048 + i * 1024))
        pc = 2 * (w & 1) + (w >> 1)
        if pc:
            for r in range(8):
                a("v_mov_b32 v%d, v%d" % (acc + r, acc + 8 * pc + r))
        if w < 3:
            a("s_branch %s_redj" % lab)
    a.label("%s_redj" % lab)
    a("v_add_u32 v%d, s%d, v%d" % (vA, sT, vA))
    a("s_waitcnt lgkmcnt(0)")
    a("s_barrier")
    for k in range(3):
        for i in range(2):
            a("ds_read_b128 %s, v%d offset:%d" % (vr(T + 8 * k + 4 * i, 4), vA, k * 2048 + i * 1024))
    for k in range(3):
        a("s_waitcnt lgkmcnt(%d)" % (4 - 2 * k))
        for r in range(0, 8, 2):
            a("v_pk_add_f32 %s, %s, %s" % (vr(acc + r, 2), vr(acc + r, 2), vr(T + 8 * k + r, 2)))


P4_X, P4_W, P4_MAT, P4_WS = 0, 49152, 14336 + 128, 28800
P4_CS = P4_W + 3 * P4_WS
P4_SX = 137216
s4Fg, s4Tg, s4RotW, s4M, s4Do = 72, 73, 74, 75, 81
v4Wo = [96, 97, 98, 99]
S4W = SE


def p4_prefetch_setup(a):
    a("s_and_b32 s%d, s%d, 3" % (sT, sXcd))
    a("s_lshl_b32 s%d, s%d, 2" % (sT, sT))
    a("s_and_b32 s%d, s%d, 3" % (sT2, sI))
    a("s_add_u32 s%d, s%d, s%d" % (s4Fg, sT, sT2))
    a("s_lshl_b32 s%d, s%d, 1" % (s4RotW, sT2))
    a("s_lshr_b32 s%d, s%d, 2" % (sT, sXcd))
    a("s_lshl_b32 s%d, s%d, 3" % (sT, sT))
    a("s_lshr_b32 s%d, s%d, 2" % (sT2, sI))
    a("s_add_u32 s%d, s%d, s%d" % (s4Tg, sT, sT2))
    a("s_cmp_ge_u32 s%d, 4" % sWave)
    a("s_cselect_b32 s%d, s%d, s%d" % (S4W, PW3, PW1))
    a("s_cselect_b32 s%d, s%d, s%d" % (S4W + 1, PW3 + 1, PW1 + 1))
    a("s_mov_b32 s%d, %d" % (s4M, P4_W))
    a("s_cselect_b32 s%d, %d, s%d" % (s4M, P4_W + P4_MAT, s4M))
    a("s_mov_b32 s%d, %d" % (S4W + 2, 448 * 3584))
    a("s_mov_b32 s%d, 0x20000" % (S4W + 3))
    a("s_and_b32 s%d, s%d, 3" % (sT, sWave))
    a("s_mul_i32 s%d, s%d, 3584" % (sT2, sT))
    a("s_add_u32 s%d, s%d, s%d" % (s4M, s4M, sT2))
    a("s_mul_i32 s%d, s%d, 224" % (sT, sT))
    a("s_mul_i32 s%d, s%d, 224" % (sT2, s4Fg))
    for i in range(4):
        a("v_add_u32 v92, s%d, v0" % sT)
        if i:
            a("v_add_u32 v92, %d, v92" % (64 * i))
        a("v_mul_u32_u24 v93, 37450, v92")
        a("v_lshrrev_b32 v93, 19, v93")
        a("v_mul_u32_u24 v94, 14, v93")
        a("v_sub_u32 v92, v92, v94")
        a("v_mul_u32_u24 v%d, 3584, v93" % v4Wo[i])
        a("v_lshl_add_u32 v%d, v92, 4, v%d" % (v4Wo[i], v4Wo[i]))
        a("v_add_u32 v%d, s%d, v%d" % (v4Wo[i], sT2, v4Wo[i]))


def p4_issueW(a, pos, i):
    if i == 0:
        a("s_mul_i32 s%d, s%d, %d" % (s4Do, s4RotW, 64 * 3584))
    a("s_add_u32 m0, s%d, %d" % (s4M, (pos % 3) * P4_WS + i * 1024))
    if i == 3:
        a("s_mov_b32 exec_hi, 0")
    a("buffer_load_dwordx4 v%d, %s, s%d offen lds" % (v4Wo[i], S4(S4W), s4Do))
    if i == 3:
        a("s_mov_b32 exec_hi, -1")
        inc_mod(a, s4RotW, 7)


def phase4(a):
    sA, sO, sC = SA, SB, SC
    sTbl, sFh, sTb, sRotX, sMx, sXo = 32, 33, 34, 35, 64, 65
    a("s_and_b32 s%d, s%d, 3" % (sTbl, sWave))
    a("s_lshr_b32 s%d, s%d, 2" % (sFh, sWave))
    a("s_lshl_b32 s%d, s%d, 2" % (sTb, s4Tg))
    a("s_add_u32 s%d, s%d, s%d" % (sTb, sTb, sTbl))
    a("s_and_b32 s%d, s%d, 3" % (sRotX, sI))
    a("s_lshl_b32 s%d, s%d, 1" % (sRotX, sRotX))
    vWa, vXa, vCr, vCo, vSw, vSr, t1, t2, t3 = 2, 3, 4, 5, 6, 7, 8, 10, 11
    a("v_lshrrev_b32 v%d, 5, v0" % t2)
    a("v_lshlrev_b32 v%d, 4, v%d" % (vCr, t2))
    a("s_lshl_b32 s%d, s%d, 9" % (sT, sFh))
    a("s_add_u32 s%d, s%d, %d" % (sT, sT, P4_CS))
    a("v_add_u32 v%d, s%d, v%d" % (vCr, sT, vCr))
    a("v_lshlrev_b32 v%d, 2, v%d" % (t1, t2))
    a("v_bfe_u32 v%d, v0, 2, 2" % t2)
    a("v_add_u32 v%d, v%d, v%d" % (t1, t1, t2))
    a("v_mul_u32_u24 v%d, 224, v%d" % (vWa, t1))
    a("v_bfe_u32 v%d, v0, 4, 1" % t1)
    a("v_mul_u32_u24 v%d, %d, v%d" % (t1, P4_MAT, t1))
    a("v_and_b32 v%d, 3, v0" % t2)
    a("v_lshlrev_b32 v%d, 3, v%d" % (t2, t2))
    a("v_add3_u32 v%d, v%d, v%d, v%d" % (vWa, vWa, t1, t2))
    a("s_lshl_b32 s%d, s%d, 7" % (sT, sFh))
    a("s_add_u32 s%d, s%d, %d" % (sT, sT, P4_W))
    a("v_add_u32 v%d, s%d, v%d" % (vWa, sT, vWa))
    a("s_lshl_b32 s%d, s%d, 12" % (sT, sTbl))
    a("v_add_u32 v%d, s%d, v%d" % (vXa, sT, LO))
    a("s_lshl_b32 s%d, s%d, 11" % (sT2, sFh))
    a("s_add_u32 s%d, s%d, s%d" % (sMx, sT, sT2))
    srd(a, sA, PWS, 28672, WS_HF)
    a("s_mul_i32 s%d, s%d, 28672" % (sT, sTb))
    srd_add(a, sA, sT)
    srd_add(a, sA, sT2)
    a("s_sub_u32 s%d, 28672, s%d" % (sA + 2, sT2))
    srd(a, sC, PWS, 2 * 1792 * 4, WS_CS)
    srd(a, sO, PWS, 4096, WS_GF)
    a("s_mul_i32 s%d, s%d, %d" % (sT, sTb, 112 * 1024))
    srd_add(a, sO, sT)
    a("s_mul_i32 s%d, s%d, 7168" % (sT, s4Fg))
    srd_add(a, sO, sT)
    a("s_lshl_b32 s%d, s%d, 12" % (sT, sFh))
    srd_add(a, sO, sT)
    a("v_lshrrev_b32 v%d, 3, v0" % t1)
    a("v_lshlrev_b32 v%d, 6, v%d" % (vCo, t1))
    a("v_bfe_u32 v%d, v0, 2, 1" % t1)
    a("v_mul_u32_u24 v%d, 7168, v%d" % (t1, t1))
    a("v_and_b32 v%d, 3, v0" % t2)
    a("v_lshlrev_b32 v%d, 4, v%d" % (t2, t2))
    a("v_add3_u32 v%d, v%d, v%d, v%d" % (vCo, vCo, t1, t2))
    a("v_and_b32 v%d, 31, v0" % t1)
    a("s_lshl_b32 s%d, s%d, 8" % (sT, sWave))
    a("s_add_u32 s%d, s%d, %d" % (sT, sT, P4_SX))
    a("v_lshl_add_u32 v%d, v%d, 3, s%d" % (vSw, t1, sT))
    a("v_xor_b32 v%d, 1024, v%d" % (vSr, vSw))
    acc = 16
    for r in range(64):
        a("v_mov_b32 v%d, 0" % (acc + r))
    hS, hQ = [88, 89], [90, 91]
    for r in hS + hQ:
        a("v_mov_b32 v%d, 0" % r)
    a("s_cmp_lg_u32 s%d, 7" % sWave)
    a("s_cbranch_scc1 p4_wait")
    a("s_lshl_b32 s%d, s%d, 7" % (sT, s4Tg))
    a("s_add_u32 s%d, s%d, %d" % (sT, sT, 32 * 128))
    a("v_mov_b32 v%d, s%d" % (t1, sT))
    a("v_mov_b32 v%d, 14" % t2)
    a("v_cmp_eq_u32 vcc, 1, v0")
    a("v_mov_b32 v%d, %d" % (t3, 64 * 128))
    a("v_cndmask_b32 v%d, v%d, v%d, vcc" % (t1, t1, t3))
    a("v_mov_b32 v%d, 28" % t3)
    a("v_cndmask_b32 v%d, v%d, v%d, vcc" % (t2, t2, t3))
    poll(a, sCT, t1, t2, t3, 2)
    a.label("p4_wait")
    a("s_barrier")
    stamp(a, 11)
    fX = [80, 84]
    fW = [100, 116]

    def body(nt, fh):
        vm = VM()
        base = [0]

        def issueX(pos, i):
            if i == 0:
                a("s_lshl_b32 s%d, s%d, 12" % (sXo, sRotX))
            a("s_add_u32 m0, s%d, %d" % (sMx, P4_X + (pos % 3) * 16384))
            a("buffer_load_dwordx4 v%d, %s, s%d offen%s sc1 lds" % (LO, S4(sA), sXo, " offset:1024" if i else ""))
            if i == 1:
                inc_mod(a, sRotX, 7)
            vm.add(pos)

        def piece(st, k):
            if k < 2:
                issueX(st, k)
            else:
                p4_issueW(a, st, k - 2)
                vm.add(st)

        def rdX(g):
            a("ds_read_b128 %s, v%d offset:%d" % (vr(fX[g & 1], 4), vXa, ((g // 4) % 3) * 16384 + (g % 4) * 1024))

        def rdW(g, tl):
            for q in range(2):
                a("ds_read_b64_tr_b16 %s, v%d offset:%d" % (vr(fW[g & 1] + 4 * tl + 2 * q, 2), vWa, (g % 4) * 3584 + q * 1792 + tl * 32))

        def sync(st):
            a("s_waitcnt vmcnt(%d) lgkmcnt(0)" % vm.need(st))
            a("s_barrier")
            nb = (st % 3) * P4_WS
            if nb != base[0]:
                a("v_add_u32 v%d, %s, v%d" % (vWa, hx(nb - base[0]), vWa))
            base[0] = nb

        plan = {}
        for s_ in range(0, 5):
            steps = [0, 1, 2] if s_ == 0 else list(range(4 * s_ - 1, 4 * s_ + 3))
            for g, ps in spread(steps, 2 if s_ == 0 else 6).items():
                plan[g] = [(s_ + 2, p) for p in ps]
        for st in range(2):
            for i in range(2):
                issueX(st, i)
        if fh == 0:
            l = uid("p4cs")
            a("s_mul_i32 s%d, s%d, 448" % (sT, s4Fg))
            a("s_cmp_lg_u32 s%d, 0" % sWave)
            a("s_cbranch_scc1 %s" % l)
            a("s_mov_b32 m0, %d" % P4_CS)
            a("s_mov_b32 exec_hi, 0xffffff")
            a("buffer_load_dwordx4 v%d, %s, s%d offen sc1 lds" % (vCo, S4(sC), sT))
            a("s_mov_b32 exec_hi, -1")
            a.label(l)
        sync(0)
        stamp(a, 12)
        rdX(0)
        for tl in range(nt):
            rdW(0, tl)
        for g in range(28):
            nxt = g + 1 < 28
            if nxt and (g + 1) % 4 == 0:
                sync((g + 1) // 4)
            else:
                a("s_waitcnt lgkmcnt(0)")
            for tl in range(nt):
                mf(a, acc + 16 * tl, fW[g & 1] + 4 * tl, fX[g & 1], acc + 16 * tl)
                if nxt:
                    if tl == 0:
                        rdX(g + 1)
                    rdW(g + 1, tl)
                if tl == 0:
                    for st, k in plan.get(g, [])[:1]:
                        piece(st, k)
                if tl == 1:
                    for st, k in plan.get(g, [])[1:]:
                        piece(st, k)
                if (g & 1) == fh and tl in (1, 2):
                    for i in range(2 * (tl - 1), 2 * tl):
                        a("v_dot2c_f32_bf16 v%d, v%d, v%d" % (hQ[i & 1], fX[g & 1] + i, fX[g & 1] + i))
                        a("v_dot2c_f32_bf16 v%d, s%d, v%d" % (hS[i & 1], sOnes, fX[g & 1] + i))
        stamp(a, 13)
        a("v_add_f32 v12, v%d, v%d" % (hS[0], hS[1]))
        a("v_add_f32 v13, v%d, v%d" % (hQ[0], hQ[1]))
        half_sum(a, 12, t1)
        half_sum(a, 13, t2)
        a("ds_write_b64 v%d, v[12:13]" % vSw)
        cs = 100
        for tl in range(nt):
            for i in range(4):
                a("ds_read_b128 %s, v%d offset:%d" % (vr(cs + 16 * tl + 4 * i, 4), vCr, tl * 128 + i * 32))
            if tl == 2 and nt == 4:
                a("s_waitcnt lgkmcnt(8)")
        a("s_waitcnt lgkmcnt(0)")
        a("s_barrier")
        a("ds_read_b64 v[14:15], v%d" % vSr)
        vMean, vVar, vC1 = 82, 84, 86
        a("s_waitcnt lgkmcnt(0)")
        a("v_add_f32 v12, v12, v14")
        a("v_add_f32 v13, v13, v15")
        a("v_mul_f32 v%d, %s, v12" % (vMean, hx(f2u(-1.0 / D))))
        a("v_mul_f32 v%d, %s, v13" % (vVar, hx(f2u(1.0 / D))))
        a("v_fma_f32 v%d, -v%d, v%d, v%d" % (vVar, vMean, vMean, vVar))
        a("v_max_f32 v%d, 0, v%d" % (vVar, vVar))
        a("v_add_f32 v%d, %s, v%d" % (vVar, hx(f2u(EPS)), vVar))
        a("v_rsq_f32 v%d, v%d" % (vC1, vVar))
        a("s_nop 0")
        a("v_mul_f32 v%d, %s, v%d" % (vC1, hx(f2u(-math.log2(math.e))), vC1))
        E = 164
        for tl in range(nt):
            c = acc + 16 * tl
            e = E + 8 * (tl & 1)
            for p in range(8):
                a("v_pk_fma_f32 %s, %s, %s, %s op_sel_hi:[1,0,1]" % (vr(c + 2 * p, 2), vr(cs + 16 * tl + 2 * p, 2), vr(vMean, 2), vr(c + 2 * p, 2)))
            for p in range(4):
                a("v_pk_mul_f32 %s, %s, %s op_sel_hi:[1,0]" % (vr(e + 2 * p, 2), vr(c + 2 * p, 2), vr(vC1, 2)))
            for r in range(8):
                a("v_exp_f32 v%d, v%d" % (e + r, e + r))
            for p in range(4):
                a("v_pk_mul_f32 %s, %s, %s" % (vr(c + 2 * p, 2), vr(c + 2 * p, 2), vr(c + 8 + 2 * p, 2)))
            for p in range(4):
                a("v_pk_fma_f32 %s, %s, %s, %s op_sel_hi:[1,0,0]" % (vr(e + 2 * p, 2), vr(e + 2 * p, 2), vr(vVar, 2), vr(vVar, 2)))
            for r in range(8):
                a("v_rcp_f32 v%d, v%d" % (e + r, e + r))
            for p in range(4):
                a("v_pk_mul_f32 %s, %s, %s" % (vr(c + 2 * p, 2), vr(c + 2 * p, 2), vr(e + 2 * p, 2)))
            for p in range(4):
                a("v_cvt_pk_bf16_f32 v%d, v%d, v%d" % (c + 8 + p, c + 2 * p, c + 2 * p + 1))
            a("buffer_store_dwordx4 %s, v%d, %s, 0 offen offset:%d sc1" % (vr(c + 8, 4), LO, S4(sO), tl * 1024))

    a("s_cmp_eq_u32 s%d, 1" % sFh)
    a("s_cbranch_scc1 p4_b")
    body(4, 0)
    a("s_branch p4_join")
    a.label("p4_b")
    body(3, 1)
    a.label("p4_join")
    a("s_lshl_b32 s%d, s%d, 7" % (sT, s4Tg))
    a("s_add_u32 s%d, s%d, %d" % (sT, sT, 48 * 128))
    stamp(a, 14)
    signal(a, sT, 2, 3)


S5W = SF
v5Wo = 9


def phase5(a):
    sA, sO, sH = SA, SB, SC
    sKq, sB, sTb, sCt, sJ, sRotX = 32, 33, 34, 35, 64, 65
    s5Tp, s5Nt, s5Rot, s5M, s5Wo, s5Do, sXo = 76, 77, 78, 79, 80, 81, 82
    a("s_cmp_ge_u32 s%d, 28" % sI)
    a("s_cbranch_scc1 all_done")
    p3_ids(a, s5Tp, s5Nt)
    a("s_lshl_b32 s%d, s%d, 7" % (sT2, s5Nt))
    wdma_off(a, v5Wo, sT2, 6, 7)
    srd(a, S5W, PW2, 1792 * 896)
    a("s_mov_b32 s%d, s%d" % (s5Rot, s5Nt))
    a("s_and_b32 s%d, s%d, 3" % (sKq, sWave))
    a("s_lshr_b32 s%d, s%d, 2" % (sB, sWave))
    a("s_mul_i32 s%d, s%d, 40960" % (s5M, sKq))
    a("s_lshl_b32 s%d, s%d, 12" % (sT3, sB))
    a("s_add_u32 s%d, s%d, s%d" % (s5M, s5M, sT3))
    a("s_mul_i32 s%d, s%d, %d" % (s5Wo, sKq, 448 * 896))
    a("s_mul_i32 s%d, s%d, %d" % (sT3, sB, 32 * 896))
    a("s_add_u32 s%d, s%d, s%d" % (s5Wo, s5Wo, sT3))
    vm = VM()

    def issueW(pos, i):
        if i == 0:
            a("s_mul_i32 s%d, s%d, %d" % (s5Do, s5Rot, 64 * 896))
            a("s_add_u32 s%d, s%d, s%d" % (s5Do, s5Do, s5Wo))
        else:
            a("s_add_u32 s%d, s%d, %d" % (s5Do, s5Do, 8 * 896))
        a("s_add_u32 m0, s%d, %d" % (s5M, (pos % 5) * 8192 + i * 1024))
        a("buffer_load_dwordx4 v%d, %s, s%d offen lds" % (v5Wo, S4(S5W), s5Do))
        if i == 3:
            inc_mod(a, s5Rot, 7)
        vm.add(("w", pos))

    a("s_lshl_b32 s%d, s%d, 1" % (sTb, s5Tp))
    a("s_add_u32 s%d, s%d, s%d" % (sTb, sTb, sB))
    a("s_and_b32 s%d, s%d, 1" % (sT, sKq))
    a("s_lshl_b32 s%d, s%d, 1" % (sCt, s5Nt))
    a("s_add_u32 s%d, s%d, s%d" % (sCt, sCt, sT))
    a("s_lshr_b32 s%d, s%d, 1" % (sJ, sKq))
    srd(a, sH, PWS, 1024, WS_HF)
    a("s_mul_i32 s%d, s%d, 28672" % (sT, sTb))
    srd_add(a, sH, sT)
    a("s_lshl_b32 s%d, s%d, 1" % (sT, sCt))
    a("s_add_u32 s%d, s%d, s%d" % (sT, sT, sJ))
    a("s_lshl_b32 s%d, s%d, 10" % (sT, sT))
    srd_add(a, sH, sT)
    vH = 72
    for pos in range(5):
        for i in range(4):
            issueW(pos, i)
    a("s_mov_b32 s%d, s%d" % (sRotX, s5Nt))
    vWa0, vWa1, vXo, vA, t1, t2 = 2, 3, 4, 5, 6, 7
    a("s_mul_i32 s%d, s%d, 40960" % (sT, sKq))
    wfrag_addr(a, vWa0, vWa1, sT, t1, t2)
    a("v_and_b32 v%d, 31, v0" % t1)
    a("v_mul_u32_u24 v%d, 896, v%d" % (vXo, t1))
    a("v_lshrrev_b32 v%d, 5, v0" % t1)
    a("v_lshl_add_u32 v%d, v%d, 4, v%d" % (vXo, t1, vXo))
    srd(a, sA, PWS, 28 * 1024, WS_GF)
    a("s_mul_i32 s%d, s%d, %d" % (sT, sTb, 112 * 1024))
    srd_add(a, sA, sT)
    a("s_mul_i32 s%d, s%d, %d" % (sT, sKq, 28 * 1024))
    srd_add(a, sA, sT)
    srd(a, sO, POUT, S * 896)
    red_addr(a, 0, sB, vA)
    acc = 16
    fX = 112
    fW = [48, 56, 64]
    for r in range(32):
        a("v_mov_b32 v%d, 0" % (acc + r))
    a("s_cmp_lg_u32 s%d, 7" % sWave)
    a("s_cbranch_scc1 p5_wait")
    a("s_lshr_b32 s%d, s%d, 1" % (sT, s5Tp))
    a("s_lshl_b32 s%d, s%d, 7" % (sT, sT))
    a("s_add_u32 s%d, s%d, %d" % (sT, sT, 48 * 128))
    a("v_mov_b32 v%d, s%d" % (t1, sT))
    a("v_mov_b32 v%d, 16" % t2)
    poll(a, sCT, t1, t2, 12, 1)
    a.label("p5_wait")
    a("s_waitcnt vmcnt(0)")
    a("s_barrier")
    stamp(a, 15)
    AH = int(OPT.get("p5ahead", 5))

    def issueX(g):
        if g % 4 == 0:
            a("s_lshl_b32 s%d, s%d, 12" % (sXo, sRotX))
        a("buffer_load_dwordx4 %s, v%d, %s, s%d offen offset:%d sc1" % (vr(fX + 4 * g, 4), LO, S4(sA), sXo, (g % 4) * 1024))
        if g % 4 == 3:
            inc_mod(a, sRotX, 7)
        vm.add(("x", g))

    def rd(g):
        c, s = divmod(g, 4)
        for t in range(2):
            for q in range(2):
                a("ds_read_b64_tr_b16 %s, v%d offset:%d" % (vr(fW[g % 3] + 4 * t + 2 * q, 2), (vWa0, vWa1)[t], (c % 5) * 8192 + (16 * s + 8 * q) * 128))

    for g in range(AH):
        issueX(g)
    rd(0)
    rd(1)
    for g in range(28):
        need = [("x", g)] + ([("w", 5), ("w", 6)] if g == 18 else [])
        a("s_waitcnt vmcnt(%d) lgkmcnt(%d)" % (vm.need(*need), 4 if g < 27 else 0))
        if g in (7, 18):
            a("s_barrier")
        mf(a, acc, fW[g % 3], fX + 4 * g, acc)
        if g + 2 < 28:
            rd(g + 2)
        mf(a, acc + 16, fW[g % 3] + 4, fX + 4 * g, acc + 16)
        if g + AH < 28:
            issueX(g + AH)
        elif g + AH == 28:
            a("buffer_load_dwordx4 %s, v%d, %s, 0 offen sc1" % (vr(vH, 4), LO, S4(sH)))
            vm.add("h")
        if 7 <= g < 15:
            issueW(5 + (g - 7) // 4, (g - 7) % 4)
    stamp(a, 16)
    a("s_barrier")
    reduce8(a, acc, sKq, vA, 112, "p5")
    a("s_mul_i32 s%d, s%d, %d" % (sT, sTb, 32 * 896))
    a("s_lshl_b32 s%d, s%d, 6" % (sT2, sCt))
    a("s_add_u32 s%d, s%d, s%d" % (sT, sT, sT2))
    a("s_lshl_b32 s%d, s%d, 5" % (sT2, sJ))
    a("s_add_u32 s%d, s%d, s%d" % (sT, sT, sT2))
    a("s_waitcnt vmcnt(0)")
    for i in range(4):
        a("v_lshlrev_b32 v%d, 16, v%d" % (t1, vH + i))
        a("v_and_b32 v%d, 0xffff0000, v%d" % (t2, vH + i))
        a("v_add_f32 v%d, v%d, v%d" % (t1, t1, acc + 2 * i))
        a("v_add_f32 v%d, v%d, v%d" % (t2, t2, acc + 2 * i + 1))
        a("v_cvt_pk_bf16_f32 v%d, v%d, v%d" % (12 + i, t1, t2))
    a("v_permlane32_swap_b32 v12, v14")
    a("v_permlane32_swap_b32 v13, v15")
    a("buffer_store_dwordx4 v[12:15], v%d, %s, s%d offen" % (vXo, S4(sO), sT))


def kernel():
    _uid[0] = 0
    a = Asm()
    a("s_cmp_ge_u32 s2, 256")
    a("s_cbranch_scc1 exit_now")
    if PROF:
        a("v_mov_b32 v255, 0")
        a("s_memrealtime s[90:91]")
        a("s_waitcnt lgkmcnt(0)")
        a("v_writelane_b32 v255, s90, 30")
    stamp(a, 0)
    a("s_load_dwordx16 s[36:51], s[0:1], 0")
    a("s_load_dwordx4 s[52:55], s[0:1], 64")
    a("v_lshrrev_b32 v1, 6, v0")
    a("v_and_b32 v0, 63, v0")
    a("v_readfirstlane_b32 s%d, v1" % sWave)
    a("s_and_b32 s%d, s2, 7" % sXcd)
    a("s_lshr_b32 s%d, s2, 3" % sI)
    a("s_mov_b32 s%d, 0x3f803f80" % sOnes)
    a("v_lshlrev_b32 v%d, 4, v0" % LO)
    phase1(a)
    slow = phase2(a)
    phase3(a)
    phase4(a)
    phase5(a)
    a.label("all_done")
    prof_end(a)
    a.label("exit_now")
    a("s_endpgm")
    slow()
    return a


def build(path):
    ref = open("cdna_kernels/%s.s.ref" % NAME).read().split("\n")
    head = [l for l in ref if l.startswith(";") and "@launch" not in l and "Override launch" not in l and "grid=ceil" not in l][:12]
    asm = kernel()
    body, desc, info = kernel_text(NAME + "_kernel", asm)
    print(path, "vgpr/agpr/sgpr/pads", info, file=sys.stderr)
    txt = "\n".join(head + ["; @launch grid=(256,1,1) block=(512,1,1) lds=163840"]) + "\n"
    txt += '.amdgcn_target "amdgcn-amd-amdhsa--gfx950"\n.text\n' + body
    txt += '.section .rodata,"a"\n.p2align 6\n' + desc
    open(path, "w").write(txt)


if __name__ == "__main__":
    args = sys.argv[1:]
    for x in list(args):
        if x == "--prof":
            PROF = True
            args.remove(x)
        elif x.startswith("--"):
            k, _, v = x[2:].partition("=")
            OPT[k] = v or True
            args.remove(x)
    build(args[0] if args else "cdna_kernels/%s.s" % NAME)
```
